```python
import torch

def _softmax(x, axis=-1):
    return torch.softmax(x, dim=axis)
def _gelu(x):
    return torch.nn.functional.gelu(x, approximate="tanh")
def _silu(x):
    return torch.nn.functional.silu(x)
def _sigmoid(x):
    return torch.sigmoid(x)
def _layernorm(x, axis=-1, eps=1e-5):
    m = x.mean(dim=axis, keepdim=True)
    v = x.var(dim=axis, keepdim=True, unbiased=False)
    return (x - m) / torch.sqrt(v + eps)
def _scatter_add(tgt, idx, src, axis=0):
    return tgt.clone().index_add_(axis, idx, src)
def _segment_sum(src, seg, n):
    out = torch.zeros((n,) + src.shape[1:], dtype=src.dtype)
    return out.index_add_(0, seg, src)
def _pad(x, pw):
    flat = tuple(v for pair in reversed(pw) for v in pair)
    return torch.nn.functional.pad(x, flat)

kernel_name = 'standalone__gqa_block_cached__sampling'

def setup_inputs():

    _w = (lambda a: (lambda t: t.to(torch.bfloat16) if t.is_floating_point() else t)(torch.as_tensor(a)))
    B, Sq, D = 32, 4, 576
    Hq, Hkv, Sk, Dh = 32, 16, 2048, 128
    assert Hq % Hkv == 0, (Hq, Hkv)
    return {
        "x": _w((lambda *s: torch.randn(*s, dtype=torch.bfloat16) * 0.8)(B, Sq, D)),
        "k_cache": _w((lambda *s: torch.randn(*s, dtype=torch.bfloat16) * 0.8)(B, Hkv, Sk, Dh)),
        "v_cache": _w((lambda *s: torch.randn(*s, dtype=torch.bfloat16) * 0.05)(B, Hkv, Sk, Dh)),
        "wq": _w((lambda *s: torch.randn(*s, dtype=torch.bfloat16) * 0.8)(D, Hq * Dh) * (D ** -0.5)),
        "wo": _w((lambda *s: torch.randn(*s, dtype=torch.bfloat16) * 0.05)(Hq * Dh, D) * ((Hq * Dh) ** -0.5)),
    }

def reference(x, k_cache, v_cache, wq, wo):
    B, Sq, D = x.shape
    Hq, Dh = 32, 128
    Hkv = k_cache.shape[1]
    rep = Hq // Hkv
    q = (lambda x, *d: x.permute(*d))((x @ wq).reshape(B, Sq, Hq, Dh), 0, 2, 1, 3)
    k = (lambda x, n, axis: torch.repeat_interleave(x, n, dim=axis))(k_cache, rep, axis=1)
    v = (lambda x, n, axis: torch.repeat_interleave(x, n, dim=axis))(v_cache, rep, axis=1)
    scores = torch.einsum("bhqd,bhkd->bhqk", q, k) * (Dh ** -0.5)
    p = _softmax(scores, axis=-1)
    o = torch.einsum("bhqk,bhkd->bhqd", p, v)
    return (lambda x, *d: x.permute(*d))(o, 0, 2, 1, 3).reshape(B, Sq, Hq * Dh) @ wo
```

```python
class Asm:
    def __init__(self):
        self.lines = []
        self._lbl = 0
    def __call__(self, s=''):
        for l in s.split('\n'):
            self.lines.append('    ' + l.strip() if l.strip() and not l.strip().endswith(':') else l.strip())
    def label(self, name):
        self.lines.append(name + ':')
    def newlabel(self, p='L'):
        self._lbl += 1
        return '%s_%d' % (p, self._lbl)
    def comment(self, s):
        self.lines.append('    ; ' + s)
    def text(self):
        return '\n'.join(self.lines) + '\n'

def vr(base, n=1):
    return 'v%d' % base if n == 1 else 'v[%d:%d]' % (base, base + n - 1)
def sr(base, n=1):
    return 's%d' % base if n == 1 else 's[%d:%d]' % (base, base + n - 1)
def ar(base, n=1):
    return 'a%d' % base if n == 1 else 'a[%d:%d]' % (base, base + n - 1)

HEADER = '''; Kernarg layout for this problem (64 bytes, ptrs only, base s[0:1]):
'''

def kernel_begin(name):
    return '''.globl %s
.p2align 8
.type %s,@function
%s:
''' % (name, name, name)

def kernel_desc(name, vgpr, sgpr=102, accum=None, wgy=False):
    if accum is None:
        accum = (vgpr + 3) // 4 * 4
    return '''.p2align 6
.amdhsa_kernel %s
  .amdhsa_next_free_vgpr %d
  .amdhsa_next_free_sgpr %d
  .amdhsa_accum_offset %d
  .amdhsa_group_segment_fixed_size 0
  .amdhsa_kernarg_size 64
  .amdhsa_user_sgpr_count 2
  .amdhsa_user_sgpr_kernarg_segment_ptr 1
  .amdhsa_system_sgpr_workgroup_id_x 1
%s.end_amdhsa_kernel
''' % (name, vgpr, sgpr, accum, '  .amdhsa_system_sgpr_workgroup_id_y 1\n' if wgy else '')
```

```python
import sys, struct, math
from asmlib import *

def f32bits(x):
    return struct.unpack('<I', struct.pack('<f', x))[0]

K1 = 'gqa_main_kernel'
K2 = 'gqa_reduce_kernel'
POFF = 0x100000
PSZ = 18432

QP = 0
OP = 32768
ML = 49152
OF = 49664
LDS_BYTES = OF + 4096

def gen(stamps=False, sig_left=2, wflags='', hprio=2, pflags='', dump=None):
    a = Asm()
    sX_, sK_, sV_, sWQ_, sWO_, sOUT_, sDBG_, sWS_ = 4, 6, 8, 10, 12, 14, 16, 18
    sK, sV, sWQ, sWO, sX, sP = 20, 24, 28, 32, 36, 40
    sPLO, sPHI, sC, sW, sHKV, sBP, sIT, sSIG, s4096 = 44, 45, 46, 47, 48, 49, 50, 51, 52
    sT0, sT1, sT2, sT3 = 53, 54, 55, 56
    sNB = 57
    sEX = 60
    sST = 64
    nstamp = [0]
    def stamp(k):
        if stamps:
            a('s_memrealtime %s' % sr(sST + 2 * k, 2))
    def srd(dst, base, nrec, offs=None):
        if offs is None:
            a('s_mov_b32 s%d, s%d' % (dst, base)); a('s_mov_b32 s%d, s%d' % (dst + 1, base + 1))
        else:
            a('s_add_u32 s%d, s%d, %s' % (dst, base, offs)); a('s_addc_u32 s%d, s%d, 0' % (dst + 1, base + 1))
        a('s_mov_b32 s%d, %s' % (dst + 2, nrec)); a('s_mov_b32 s%d, 0x20000' % (dst + 3))

    a('s_cmp_ge_u32 s2, 256')
    a('s_cbranch_scc1 L1_end')
    a('s_load_dwordx16 s[4:19], s[0:1], 0')
    if stamps:
        for k in range(1, 8):
            a('s_mov_b64 %s, 0' % sr(sST + 2 * k, 2))
    stamp(0)
    vLANE, vR, vG = 0, 9, 10
    a('v_lshrrev_b32 v1, 6, v0')
    a('v_and_b32 v0, 63, v0')
    a('v_and_b32 v%d, 15, v0' % vR)
    a('v_readfirstlane_b32 s%d, v1' % sW)
    a('v_lshrrev_b32 v%d, 4, v0' % vG)
    a('s_and_b32 s%d, s2, 7' % sHKV)
    a('s_lshl_b32 s%d, s%d, 1' % (sHKV, sHKV))
    a('s_bfe_u32 s%d, s2, 0x10003' % sT0)
    a('s_add_u32 s%d, s%d, s%d' % (sHKV, sHKV, sT0))
    a('s_lshr_b32 s%d, s2, 4' % sBP)
    a('s_mov_b32 s%d, 0x05040100' % sPLO)
    a('s_mov_b32 s%d, 0x07060302' % sPHI)
    a('s_mov_b32 s%d, 0x%08x' % (sC, f32bits(math.log2(math.e) / math.sqrt(128.0))))
    a('s_movk_i32 s%d, 0x1000' % s4096)
    vSIG = 11
    a('v_and_b32 v%d, 3, v%d' % (vSIG, vR))
    a('v_lshlrev_b32 v%d, 2, v%d' % (vSIG, vSIG))
    a('v_lshrrev_b32 v1, 2, v%d' % vR)
    a('v_add_u32 v%d, v%d, v1' % (vSIG, vSIG))
    a('s_cmp_ge_u32 s%d, 4' % sW)
    a('s_cbranch_scc1 L1_helper')

    vKo, vVo, vM, vMC, vL, vAL, vT, vU = 1, 2, 3, 4, 5, 6, 7, 8
    vS, vP, vTT, vQ, vO = 12, 20, 24, 32, 48
    vKB = [80, 144]; vVB = [112, 176]
    sPp = sT3
    a('s_lshr_b32 s%d, s%d, 1' % (sPp, sW))
    a('s_and_b32 s%d, s%d, 1' % (sT1, sW))
    a('s_lshl_b32 s%d, s%d, 13' % (sT1, sT1))
    a('v_lshlrev_b32 v%d, 8, v%d' % (vKo, vSIG))
    a('v_lshl_add_u32 v%d, v%d, 4, v%d' % (vKo, vG, vKo))
    a('v_add_u32 v%d, s%d, v%d' % (vKo, sT1, vKo))
    a('v_lshlrev_b32 v%d, 4, v0' % vVo)
    a('v_add_u32 v%d, s%d, v%d' % (vVo, sT1, vVo))
    a('s_lshl_b32 s%d, s%d, 1' % (sT0, sBP))
    a('s_add_u32 s%d, s%d, s%d' % (sT0, sT0, sPp))
    a('s_lshl_b32 s%d, s%d, 4' % (sT0, sT0))
    a('s_add_u32 s%d, s%d, s%d' % (sT0, sT0, sHKV))
    a('s_lshl_b32 s%d, s%d, 19' % (sT0, sT0))
    a('s_waitcnt lgkmcnt(0)')
    srd(sK, sK_, '0x80000', 's%d' % sT0)
    srd(sV, sV_, '0x80000', 's%d' % sT0)
    def loadK(u):
        for t in range(2):
            for s in range(4):
                a('buffer_load_dwordx4 %s, v%d, %s, %s offen offset:%d nt' % (vr(vKB[u] + (t * 4 + s) * 4, 4), vKo, sr(sK, 4), ('s%d' % s4096) if t else '0', s * 64))
        a('v_add_u32 v%d, 0x4000, v%d' % (vKo, vKo))
    def loadV_list(u):
        l = []
        for i in range(8):
            l.append('buffer_load_dwordx4 %s, v%d, %s, %s offen offset:%d nt' % (vr(vVB[u] + i * 4, 4), vVo, sr(sV, 4), ('s%d' % s4096) if i >= 4 else '0', (i % 4) * 1024))
        l.append('v_add_u32 v%d, 0x4000, v%d' % (vVo, vVo))
        return l
    for u in range(2):
        loadK(u)
        for l in loadV_list(u): a(l)
    a('v_mov_b32 v%d, 0xff800000' % vM)
    a('v_mov_b32 v%d, 0xff800000' % vMC)
    a('v_mov_b32 v%d, 0' % vL)
    a('v_bfe_u32 v%d, v0, 2, 1' % vT)
    a('v_lshlrev_b32 v%d, 14, v%d' % (vT, vT))
    a('v_lshl_add_u32 v%d, v0, 4, v%d' % (vT, vT))
    a('s_barrier')
    stamp(1)
    vTMP = 208
    for j in range(8):
        a('ds_read_b128 %s, v%d offset:%d' % (vr(vO + 4 * j, 4), vT, QP + j * 1024))
        a('ds_read_b128 %s, v%d offset:%d' % (vr(vTMP + 4 * j, 4), vT, QP + 8192 + j * 1024))
    for jp in range(4):
        a('s_waitcnt lgkmcnt(%d)' % (12 - 4 * jp))
        for e in range(2):
            j = 2 * jp + e
            a('v_pk_add_f32 %s, %s, %s' % (vr(vO + 4 * j, 2), vr(vO + 4 * j, 2), vr(vTMP + 4 * j, 2)))
            a('v_pk_add_f32 %s, %s, %s' % (vr(vO + 4 * j + 2, 2), vr(vO + 4 * j + 2, 2), vr(vTMP + 4 * j + 2, 2)))
        for s in range(4):
            a('v_cvt_pk_bf16_f32 v%d, v%d, v%d' % (vQ + 4 * s + jp, vO + 4 * (2 * jp) + s, vO + 4 * (2 * jp + 1) + s))
    for i in range(32):
        a('v_mov_b32 v%d, 0' % (vO + i))
    NIT = 16
    a('s_mov_b32 s%d, %d' % (sIT, NIT))
    a('s_mov_b32 s%d, %d' % (sSIG, sig_left))
    a('s_cmp_eq_u32 s%d, 0' % sPp)
    a('s_cbranch_scc1 L1_loop')
    a('s_mov_b32 s%d, -1' % sSIG)
    a('s_barrier')
    stamp(2)
    a.label('L1_loop')
    a('s_cmp_lg_u32 s%d, s%d' % (sIT, sSIG))
    a('s_cbranch_scc1 L1_nosig')
    a('s_barrier')
    stamp(2)
    a.label('L1_nosig')
    for u in range(2):
        kb, vb = vKB[u], vVB[u]
        a('s_waitcnt vmcnt(24)')
        for s in range(4):
            for t in range(2):
                a('v_mfma_f32_16x16x32_bf16 %s, %s, %s, %s' % (vr(vS + 4 * t, 4), vr(kb + (t * 4 + s) * 4, 4), vr(vQ + 4 * s, 4), '0' if s == 0 else vr(vS + 4 * t, 4)))
        loadK(u)
        S = [vS + i for i in range(8)]
        a('v_max3_f32 v%d, v%d, v%d, v%d' % (vT, S[0], S[1], S[2]))
        a('v_max3_f32 v%d, v%d, v%d, v%d' % (vU, S[3], S[4], S[5]))
        a('v_max3_f32 v%d, v%d, v%d, v%d' % (vT, vT, S[6], S[7]))
        a('v_max3_f32 v%d, v%d, v%d, v%d' % (vT, vT, vU, vM))
        a('v_mov_b32 v%d, v%d' % (vU, vT))
        a('s_nop 1')
        a('v_permlane16_swap_b32 v%d, v%d' % (vT, vU))
        a('s_nop 0')
        a('v_max_f32 v%d, v%d, v%d' % (vT, vT, vU))
        a('v_mov_b32 v%d, v%d' % (vU, vT))
        a('s_nop 1')
        a('v_permlane32_swap_b32 v%d, v%d' % (vT, vU))
        a('s_nop 0')
        a('v_max_f32 v%d, v%d, v%d' % (vM, vT, vU))
        a('v_mul_f32 v%d, s%d, v%d' % (vT, sC, vM))
        a('v_sub_f32 v%d, v%d, v%d' % (vAL, vMC, vT))
        a('v_exp_f32 v%d, v%d' % (vAL, vAL))
        a('v_mov_b32 v%d, v%d' % (vMC, vT))
        for i in range(8):
            a('v_fma_f32 v%d, v%d, s%d, -v%d' % (S[i], S[i], sC, vMC))
        for i in range(8):
            a('v_exp_f32 v%d, v%d' % (S[i], S[i]))
        a('v_cmp_neq_f32 vcc, 1.0, v%d' % vAL)
        a('v_fma_f32 v%d, v%d, v%d, v%d' % (vL, vL, vAL, S[0]))
        a('v_add_f32 v%d, v%d, v%d' % (vT, S[1], S[2]))
        a('v_add_f32 v%d, v%d, v%d' % (vU, S[3], S[4]))
        a('v_add_f32 v%d, v%d, v%d' % (vL, vL, S[5]))
        a('v_add_f32 v%d, v%d, v%d' % (vT, vT, S[6]))
        a('v_add_f32 v%d, v%d, v%d' % (vU, vU, S[7]))
        for q in range(4):
            a('v_cvt_pk_bf16_f32 v%d, v%d, v%d' % (vP + q, S[2 * q], S[2 * q + 1]))
        a('v_add_f32 v%d, v%d, v%d' % (vL, vL, vT))
        a('v_add_f32 v%d, v%d, v%d' % (vL, vL, vU))
        lsk = 'L1_skip%d' % u
        a('s_cbranch_vccz %s' % lsk)
        for i in range(16):
            a('v_pk_mul_f32 %s, %s, %s op_sel_hi:[1,0]' % (vr(vO + 2 * i, 2), vr(vO + 2 * i, 2), vr(vAL, 2)))
        a.label(lsk)
        a('s_waitcnt vmcnt(24)')
        def perms(j):
            tt = vTT + 4 * (j & 1)
            x = sPHI if (j & 1) else sPLO
            for pp in range(4):
                a('v_perm_b32 v%d, v%d, v%d, s%d' % (tt + pp, vb + (2 * pp + 1) * 4 + (j >> 1), vb + (2 * pp) * 4 + (j >> 1), x))
        def pv(j):
            a('v_mfma_f32_16x16x32_bf16 %s, %s, %s, %s' % (vr(vO + 4 * j, 4), vr(vTT + 4 * (j & 1), 4), vr(vP, 4), vr(vO + 4 * j, 4)))
        perms(0)
        for j in range(7):
            perms(j + 1)
            pv(j)
        lv = loadV_list(u)
        a(lv[0])
        pv(7)
        for l in lv[1:]: a(l)
    a('s_sub_u32 s%d, s%d, 1' % (sIT, sIT))
    a('s_cmp_lg_u32 s%d, 0' % sIT)
    a('s_cbranch_scc1 L1_loop')
    stamp(3)
    a('v_mov_b32 v%d, v%d' % (vU, vL))
    a('s_nop 1')
    a('v_permlane16_swap_b32 v%d, v%d' % (vL, vU))
    a('s_nop 0')
    a('v_add_f32 v%d, v%d, v%d' % (vL, vL, vU))
    a('v_mov_b32 v%d, v%d' % (vU, vL))
    a('s_nop 1')
    a('v_permlane32_swap_b32 v%d, v%d' % (vL, vU))
    a('s_nop 0')
    a('v_add_f32 v%d, v%d, v%d' % (vL, vL, vU))
    a('v_and_b32 v%d, 7, v0' % vT)
    a('v_lshl_add_u32 v%d, v%d, 3, v%d' % (vU, vG, vT))
    a('v_lshlrev_b32 v%d, 4, v%d' % (vU, vU))
    a('s_lshl_b32 s%d, s%d, 12' % (sT0, sW))
    a('v_add_u32 v%d, s%d, v%d' % (vU, sT0, vU))
    a('s_lshl_b32 s%d, s%d, 6' % (sT0, sW))
    a('v_lshlrev_b32 v%d, 3, v%d' % (vT, vT))
    a('v_add_u32 v%d, s%d, v%d' % (vT, sT0, vT))
    a('s_mov_b32 s%d, 0x00ff00ff' % sEX)
    a('s_cmp_eq_u32 s%d, 0' % sPp)
    a('s_cselect_b32 s%d, s%d, 0xff00ff00' % (sEX, sEX))
    a('s_mov_b32 s%d, s%d' % (sEX + 1, sEX))
    a('s_mov_b64 exec, %s' % sr(sEX, 2))
    for j in range(8):
        a('ds_write_b128 v%d, %s offset:%d' % (vU, vr(vO + 4 * j, 4), OP + j * 512))
    a('ds_write_b64 v%d, %s offset:%d' % (vT, vr(vMC, 2), ML))
    a('s_mov_b64 exec, -1')
    a('s_waitcnt vmcnt(0) lgkmcnt(0)')
    a('s_cmp_lg_u32 s%d, 0' % sPp)
    a('s_cbranch_scc1 L1_bar3')
    a('s_add_u32 s%d, s%d, 4' % (sNB, sW))
    a('s_branch L1_wo')

    a.label('L1_helper')
    if hprio:
        a('s_setprio %d' % hprio)
    vWo_, vXo = 1, 2
    vACC, vHT = 12, 44
    vRB = [52 + 36 * i for i in range(3)]
    a('s_sub_u32 s%d, s%d, 4' % (sNB, sW))
    a('s_lshr_b32 s%d, s%d, 1' % (sT0, sNB))
    a('s_and_b32 s%d, s%d, 1' % (sT1, sNB))
    a('v_lshlrev_b32 v%d, 16, v%d' % (vWo_, vG))
    a('v_lshl_add_u32 v%d, v%d, 4, v%d' % (vWo_, vSIG, vWo_))
    a('s_lshl_b32 s%d, s%d, 9' % (sT2, sHKV))
    a('s_lshl_b32 s%d, s%d, 8' % (sT0, sT0))
    a('s_add_u32 s%d, s%d, s%d' % (sT2, sT2, sT0))
    a('s_mul_i32 s%d, s%d, %d' % (sT0, sT1, 288 * 8192))
    a('s_add_u32 s%d, s%d, s%d' % (sT2, sT2, sT0))
    a('v_add_u32 v%d, s%d, v%d' % (vWo_, sT2, vWo_))
    a('v_lshrrev_b32 v3, 3, v%d' % vR)
    a('v_lshlrev_b32 v3, 2, v3')
    a('v_and_b32 v4, 3, v%d' % vR)
    a('v_add_u32 v3, v3, v4')
    a('v_mul_u32_u24 v3, 1152, v3')
    a('v_lshl_add_u32 v%d, v%d, 4, v3' % (vXo, vG))
    a('s_mul_i32 s%d, s%d, %d' % (sT0, sBP, 8 * 1152))
    a('s_mul_i32 s%d, s%d, 576' % (sT1, sT1))
    a('s_add_u32 s%d, s%d, s%d' % (sT0, sT0, sT1))
    a('v_add_u32 v%d, s%d, v%d' % (vXo, sT0, vXo))
    a('s_waitcnt lgkmcnt(0)')
    srd(sWQ, sWQ_, '%d' % (576 * 8192))
    srd(sX, sX_, '%d' % (128 * 1152))
    sSO = sT2
    a('s_mov_b32 s%d, 0' % sSO)
    def loadWQ(u):
        a('buffer_load_dwordx4 %s, v%d, %s, 0 offen' % (vr(vRB[u] + 32, 4), vXo, sr(sX, 4)))
        for i in range(8):
            a('buffer_load_dwordx4 %s, v%d, %s, s%d offen %s' % (vr(vRB[u] + 4 * i, 4), vWo_, sr(sWQ, 4), sSO, wflags))
            a('s_add_u32 s%d, s%d, %d' % (sSO, sSO, 8192 if i < 7 else 25 * 8192))
        a('v_add_u32 v%d, 64, v%d' % (vXo, vXo))
    for u in range(3):
        loadWQ(u)
    for i in range(32):
        a('v_mov_b32 v%d, 0' % (vACC + i))
    a('s_mov_b32 s%d, 3' % sIT)
    a.label('L1_qloop')
    a('s_cmp_lg_u32 s%d, 1' % sIT)
    a('s_cbranch_scc1 L1_qnl')
    a('s_mov_b32 s%d, 0' % (sWQ + 2))
    a('s_mov_b32 s%d, 0' % (sX + 2))
    a.label('L1_qnl')
    for u in range(3):
        rb = vRB[u]
        a('s_waitcnt vmcnt(18)')
        def perms(j):
            tt = vHT + 4 * (j & 1)
            x = sPHI if (j & 1) else sPLO
            for pp in range(4):
                a('v_perm_b32 v%d, v%d, v%d, s%d' % (tt + pp, rb + (2 * pp + 1) * 4 + (j >> 1), rb + (2 * pp) * 4 + (j >> 1), x))
        def mm(j):
            a('v_mfma_f32_16x16x32_bf16 %s, %s, %s, %s' % (vr(vACC + 4 * j, 4), vr(vHT + 4 * (j & 1), 4), vr(rb + 32, 4), vr(vACC + 4 * j, 4)))
        perms(0)
        for j in range(7):
            perms(j + 1)
            mm(j)
        a('s_nop 0')
        mm(7)
        loadWQ(u)
    a('s_sub_u32 s%d, s%d, 1' % (sIT, sIT))
    a('s_cmp_lg_u32 s%d, 0' % sIT)
    a('s_cbranch_scc1 L1_qloop')
    a('s_lshl_b32 s%d, s%d, 13' % (sT0, sNB))
    a('v_lshlrev_b32 v3, 4, v0')
    a('v_add_u32 v3, s%d, v3' % sT0)
    for j in range(8):
        a('ds_write_b128 v3, %s offset:%d' % (vr(vACC + 4 * j, 4), QP + j * 1024))
    a('s_waitcnt vmcnt(0) lgkmcnt(0)')
    stamp(1)
    a('s_barrier')

    a.label('L1_wo')
    vDA, vOFR, vWF = 8, 32, 64
    vWOo = 1
    srd(sWO, sWO_, '%d' % (4096 * 1152))
    a('v_mul_u32_u24 v%d, 2304, v%d' % (vWOo, vG))
    a('v_mul_u32_u24 v2, 12, v%d' % vR)
    a('v_add_u32 v%d, v%d, v2' % (vWOo, vWOo))
    a('s_mul_i32 s%d, s%d, 192' % (sT0, sNB))
    a('s_mul_i32 s%d, s%d, %d' % (sT1, sHKV, 256 * 1152))
    a('s_add_u32 s%d, s%d, s%d' % (sT0, sT0, sT1))
    a('v_add_u32 v%d, s%d, v%d' % (vWOo, sT0, vWOo))
    for kap in range(8):
        for i in range(8):
            row = 32 * kap + 8 * (i & 3) + (i >> 2)
            a('s_mov_b32 s%d, %d' % (sT0, row * 1152))
            a('buffer_load_dwordx3 %s, v%d, %s, s%d offen %s' % (vr(vOFR + 4 * i, 3), vWOo, sr(sWO, 4), sT0, wflags))
        a('s_waitcnt vmcnt(0)')
        for j in range(6):
            x = sPHI if (j & 1) else sPLO
            for pp in range(4):
                a('v_perm_b32 v%d, v%d, v%d, s%d' % (vWF + (kap * 6 + j) * 4 + pp, vOFR + (2 * pp + 1) * 4 + (j >> 1), vOFR + (2 * pp) * 4 + (j >> 1), x))
    stamp(4)
    a('s_cmp_lt_u32 s%d, 4' % sW)
    a('s_cbranch_scc1 L1_bar3')
    a('s_barrier')
    a.label('L1_bar3')
    a('s_and_b32 s%d, s%d, 3' % (sT0, sW))
    a('s_lshl_b32 s%d, s%d, 10' % (sT0, sT0))
    a('s_lshr_b32 s%d, s%d, 2' % (sT1, sW))
    a('s_lshl_b32 s%d, s%d, 13' % (sT2, sT1))
    a('s_add_u32 s%d, s%d, s%d' % (sT0, sT0, sT2))
    a('v_lshlrev_b32 v1, 4, v0')
    a('v_add_u32 v1, s%d, v1' % sT0)
    a('v_and_b32 v2, 7, v0')
    a('v_lshlrev_b32 v3, 3, v2')
    a('s_lshl_b32 s%d, s%d, 7' % (sT2, sT1))
    a('v_add_u32 v3, s%d, v3' % sT2)
    a('v_lshrrev_b32 v4, 2, v2')
    a('v_bfe_u32 v5, v0, 3, 2')
    a('v_lshl_add_u32 v4, v4, 2, v5')
    a('v_lshlrev_b32 v4, 9, v4')
    a('v_and_b32 v5, 3, v0')
    a('v_lshl_add_u32 v4, v5, 4, v4')
    a('v_lshrrev_b32 v5, 5, v0')
    a('v_lshl_add_u32 v4, v5, 3, v4')
    a('s_and_b32 s%d, s%d, 3' % (sT0, sW))
    a('s_lshl_b32 s%d, s%d, 7' % (sT0, sT0))
    a('s_lshl_b32 s%d, s%d, 6' % (sT2, sT1))
    a('s_add_u32 s%d, s%d, s%d' % (sT0, sT0, sT2))
    a('v_add_u32 v4, s%d, v4' % sT0)
    a('v_lshrrev_b32 v5, 4, v0')
    a('v_lshlrev_b32 v5, 7, v5')
    a('v_lshl_add_u32 v5, v2, 4, v5')
    a('s_lshl_b32 s%d, s%d, 4' % (sT0, sBP))
    a('s_add_u32 s%d, s%d, s%d' % (sT0, sT0, sHKV))
    a('s_mul_i32 s%d, s%d, %d' % (sT0, sT0, PSZ))
    a('s_add_u32 s%d, s%d, %d' % (sT0, sT0, POFF))
    srd(sP, sWS_, '%d' % PSZ, 's%d' % sT0)
    a('s_mul_i32 s%d, s%d, 3072' % (sT2, sNB))
    a('s_barrier')
    stamp(5)
    a('ds_read2_b64 v[8:11], v3 offset0:%d offset1:%d' % (ML // 8 % 256, (ML + 64) // 8 % 256) if False else 'ds_read_b64 v[8:9], v3 offset:%d' % ML)
    a('ds_read_b64 v[10:11], v3 offset:%d' % (ML + 64))
    a('ds_read_b128 v[12:15], v1 offset:%d' % OP)
    a('ds_read_b128 v[16:19], v1 offset:%d' % (OP + 4096))
    a('s_waitcnt lgkmcnt(2)')
    a('v_max_f32 v20, v8, v10')
    a('v_sub_f32 v8, v8, v20')
    a('v_sub_f32 v10, v10, v20')
    a('v_exp_f32 v8, v8')
    a('v_exp_f32 v10, v10')
    a('s_nop 0')
    a('v_mul_f32 v9, v8, v9')
    a('v_fma_f32 v9, v10, v11, v9')
    a('v_rcp_f32 v9, v9')
    a('s_nop 0')
    a('v_mul_f32 v8, v8, v9')
    a('v_mul_f32 v10, v10, v9')
    a('s_waitcnt lgkmcnt(0)')
    for q in range(4):
        a('v_mul_f32 v%d, v8, v%d' % (12 + q, 12 + q))
    for q in range(4):
        a('v_fma_f32 v%d, v10, v%d, v%d' % (12 + q, 16 + q, 12 + q))
    a('v_cvt_pk_bf16_f32 v20, v12, v13')
    a('v_cvt_pk_bf16_f32 v21, v14, v15')
    a('ds_write_b64 v4, v[20:21] offset:%d' % OF)
    a('s_waitcnt lgkmcnt(0)')
    a('s_barrier')
    stamp(6)
    a('s_and_b32 s%d, s%d, 6' % (sT0, sW))
    a('s_cmp_eq_u32 s%d, 2' % sT0)
    a('s_cbranch_scc1 L1_fin')
    for kap in range(8):
        a('ds_read_b128 %s, v5 offset:%d' % (vr(vOFR + 4 * kap, 4), OF + kap * 512))
    for kap in range(8):
        a('s_waitcnt lgkmcnt(%d)' % (7 - kap))
        for j in range(6):
            a('v_mfma_f32_16x16x32_bf16 %s, %s, %s, %s' % (vr(vDA + 4 * j, 4), vr(vWF + (kap * 6 + j) * 4, 4), vr(vOFR + 4 * kap, 4), '0' if kap == 0 else vr(vDA + 4 * j, 4)))
    a('s_mov_b32 s%d, 0x00ff00ff' % sEX)
    a('s_mov_b32 s%d, 0x00ff00ff' % (sEX + 1))
    a('s_mov_b64 exec, %s' % sr(sEX, 2))
    a('s_nop 0')
    for j in range(6):
        a('buffer_store_dwordx4 %s, v5, %s, s%d offen offset:%d %s' % (vr(vDA + 4 * j, 4), sr(sP, 4), sT2, j * 512, pflags))
        if j < 5: a('s_nop 0')
    a('s_mov_b64 exec, -1')
    a.label('L1_fin')
    if stamps:
        a('s_waitcnt vmcnt(0)')
        stamp(7)
        a('s_waitcnt lgkmcnt(0)')
        a('s_lshl_b32 s%d, s2, 3' % sT0)
        a('s_add_u32 s%d, s%d, s%d' % (sT0, sT0, sW))
        a('s_lshl_b32 s%d, s%d, 6' % (sT0, sT0))
        a('v_mov_b32 v1, s%d' % sT0)
        for k in range(16):
            a('v_mov_b32 v%d, s%d' % (8 + k, sST + k))
        a('s_mov_b64 exec, 1')
        for k in range(4):
            a('global_store_dwordx4 v1, %s, %s offset:%d' % (vr(8 + 4 * k, 4), sr(sWS_, 2), 16 * k))
    a.label('L1_end')
    a('s_endpgm')
    k1 = a.text()

    a = Asm()
    a('s_cmp_ge_u32 s2, 18')
    a('s_cbranch_scc1 L2_end')
    a('s_load_dwordx2 s[4:5], s[0:1], 40')
    a('s_load_dwordx2 s[6:7], s[0:1], 56')
    a('v_lshlrev_b32 v1, 4, v0')
    a('s_mul_i32 s16, s3, %d' % (16 * PSZ))
    a('s_lshl_b32 s17, s2, 10')
    a('s_add_u32 s16, s16, s17')
    a('s_add_u32 s16, s16, %d' % POFF)
    a('s_mul_i32 s18, s2, 21846')
    a('s_lshr_b32 s18, s18, 16')
    a('s_mul_i32 s19, s18, 3')
    a('s_sub_u32 s19, s2, s19')
    a('s_mul_i32 s18, s18, 192')
    a('s_lshl_b32 s19, s19, 2')
    a('s_add_u32 s18, s18, s19')
    a('s_mul_i32 s19, s3, %d' % (8 * 1152))
    a('s_add_u32 s18, s18, s19')
    a('v_and_b32 v2, 7, v0')
    a('v_mul_u32_u24 v2, 1152, v2')
    a('v_bfe_u32 v3, v0, 3, 2')
    a('v_mul_u32_u24 v3, 48, v3')
    a('v_add_u32 v2, v2, v3')
    a('v_lshrrev_b32 v3, 5, v0')
    a('v_lshl_add_u32 v2, v3, 1, v2')
    a('v_add_u32 v2, s18, v2')
    a('s_waitcnt lgkmcnt(0)')
    a('s_add_u32 s8, s6, s16'); a('s_addc_u32 s9, s7, 0'); a('s_mov_b32 s10, %d' % (16 * PSZ)); a('s_mov_b32 s11, 0x20000')
    a('s_mov_b32 s12, s4'); a('s_mov_b32 s13, s5'); a('s_mov_b32 s14, %d' % (128 * 1152)); a('s_mov_b32 s15, 0x20000')
    for h in range(16):
        if h:
            a('s_mov_b32 s20, %d' % (h * PSZ))
        a('buffer_load_dwordx4 %s, v1, s[8:11], %s offen' % (vr(4 + 4 * h, 4), 's20' if h else '0'))
    for h in range(1, 16):
        a('s_waitcnt vmcnt(%d)' % (15 - h))
        a('v_pk_add_f32 v[4:5], v[4:5], %s' % vr(4 + 4 * h, 2))
        a('v_pk_add_f32 v[6:7], v[6:7], %s' % vr(6 + 4 * h, 2))
    a('v_cvt_pk_bf16_f32 v8, v4, v5')
    a('v_cvt_pk_bf16_f32 v9, v6, v7')
    a('buffer_store_short v8, v2, s[12:15], 0 offen')
    a('buffer_store_short_d16_hi v8, v2, s[12:15], 0 offen offset:12')
    a('buffer_store_short v9, v2, s[12:15], 0 offen offset:24')
    a('buffer_store_short_d16_hi v9, v2, s[12:15], 0 offen offset:36')
    a.label('L2_end')
    a('s_endpgm')
    k2 = a.text()

    txt = HEADER
    txt += '; @launch kernel=%s grid=(256,1,1) block=(512,1,1) lds=%d\n' % (K1, LDS_BYTES)
    txt += '; @launch kernel=%s grid=(18,16,1) block=(64,1,1) lds=0\n' % K2
    txt += '.amdgcn_target "amdgcn-amd-amdhsa--gfx950"\n.text\n'
    txt += kernel_begin(K1) + k1 + kernel_begin(K2) + k2
    txt += '.section .rodata,"a"\n' + kernel_desc(K1, 256, 96) + kernel_desc(K2, 72, 32, wgy=True)
    return txt

if __name__ == '__main__':
    open('g1.s', 'w').write(gen())
    open('g1_st.s', 'w').write(gen(stamps=True))
    open('standalone__gqa_block_cached__sampling.s', 'w').write(gen())
```

```python
import sys, struct, math
from asmlib import *

def f32bits(x):
    return struct.unpack('<I', struct.pack('<f', x))[0]

K1 = 'gqa_main_kernel'
K2 = 'gqa_reduce_kernel'
POFF = 0x100000
PSZ = 18432

QP = 0
QS = 784
OP = 25088
ML = OP + 16384
OF = ML + 512
LDS_BYTES = OF + 4096
XP = OP

def gen(stamps=False, wqflags='nt', woflags='nt', xflags='nt', hprio=2, pflags='', pre0=4, bar0=False,
        sig0=30, sigmul=0, sigby='bp', nowo=False, noq=False, rot=True, sdry=False, hdry=False, hmap=1, barB=False, qst=False, qcont=False, qpipe=2, nwg=256, qpat=0, qtwice=False, kpat=0, cap=None, capl=None, wowin=None, woprio=None, worot=False, bar0late=False, bar0u=5, dbg=False):
    a = Asm()
    sX_, sK_, sV_, sWQ_, sWO_, sOUT_, sDBG_, sWS_ = 4, 6, 8, 10, 12, 14, 16, 18
    sK, sV, sWQ, sWO, sX, sP = 20, 24, 28, 32, 36, 40
    sPLO, sPHI, sC, sW, sHKV, sBP, sIT, sSIG, s4096 = 44, 45, 46, 47, 48, 49, 50, 51, 52
    sT0, sT1, sT2, sT3 = 53, 54, 55, 56
    sNB, sROT = 57, 58
    sEX = 60
    sST = 64
    def stamp(k, q=False):
        if qst and k in (2, 3, 4, 5, 6) and not q:
            return
        if q and not qst:
            return
        if stamps:
            a('s_memrealtime %s' % sr(sST + 2 * k, 2))
    def srd(dst, base, nrec, offs=None):
        if offs is None:
            a('s_mov_b32 s%d, s%d' % (dst, base)); a('s_mov_b32 s%d, s%d' % (dst + 1, base + 1))
        else:
            a('s_add_u32 s%d, s%d, %s' % (dst, base, offs)); a('s_addc_u32 s%d, s%d, 0' % (dst + 1, base + 1))
        a('s_mov_b32 s%d, %s' % (dst + 2, nrec)); a('s_mov_b32 s%d, 0x20000' % (dst + 3))

    a('s_cmp_ge_u32 s2, %d' % nwg)
    a('s_cbranch_scc1 L1_end')
    a('s_load_dwordx16 s[4:19], s[0:1], 0')
    if stamps:
        for k in range(1, 8):
            a('s_mov_b64 %s, 0' % sr(sST + 2 * k, 2))
    stamp(0)
    vR, vG, vSIG = 9, 10, 11
    a('v_lshrrev_b32 v1, 6, v0')
    a('v_and_b32 v0, 63, v0')
    a('v_and_b32 v%d, 15, v0' % vR)
    a('v_readfirstlane_b32 s%d, v1' % sW)
    a('v_lshrrev_b32 v%d, 4, v0' % vG)
    a('s_bfe_u32 s%d, s2, 0x%x' % (sHKV, ((4 - hmap) << 16) | (hmap - 1)))
    a('s_lshl_b32 s%d, s%d, %d' % (sHKV, sHKV, hmap))
    a('s_bfe_u32 s%d, s2, 0x%x' % (sT0, (hmap << 16) | 3))
    a('s_add_u32 s%d, s%d, s%d' % (sHKV, sHKV, sT0))
    a('s_lshr_b32 s%d, s2, %d' % (sBP, 3 + hmap))
    if hmap > 1:
        a('s_lshl_b32 s%d, s%d, %d' % (sBP, sBP, hmap - 1))
        a('s_and_b32 s%d, s2, %d' % (sT0, (1 << (hmap - 1)) - 1))
        a('s_add_u32 s%d, s%d, s%d' % (sBP, sBP, sT0))
    a('s_mov_b32 s%d, 0x05040100' % sPLO)
    a('s_mov_b32 s%d, 0x07060302' % sPHI)
    a('s_sub_u32 s%d, s%d, 2' % (sNB, sW))
    a('s_cmp_ge_u32 s%d, 2' % sW)
    a('s_cbranch_scc1 L1_helper')

    vKo, vVo, vM, vMC, vL, vAL, vT, vU = 1, 2, 3, 4, 5, 6, 7, 8
    vS, vP, vTT, vQ, vO = 12, 28, 32, 40, 48
    vQA = 11
    vKB = [80, 144]; vVB = [112, 176]
    a('s_mov_b32 s%d, 0x%08x' % (sC, f32bits(math.log2(math.e) / math.sqrt(128.0))))
    a('s_movk_i32 s%d, 0x1000' % s4096)
    a('s_lshl_b32 s%d, s%d, 13' % (sT1, sW))
    a('v_bfe_u32 v%d, v0, 1, 1' % vKo)
    a('v_bfe_u32 v%d, v0, 2, 2' % vT)
    a('v_lshl_add_u32 v%d, v%d, 2, v%d' % (vKo, vKo, vT))
    a('v_lshlrev_b32 v%d, 8, v%d' % (vKo, vKo))
    a('v_lshl_add_u32 v%d, v%d, 5, v%d' % (vKo, vG, vKo))
    a('v_and_b32 v%d, 1, v0' % vT)
    a('v_lshl_add_u32 v%d, v%d, 4, v%d' % (vKo, vT, vKo))
    a('v_add_u32 v%d, s%d, v%d' % (vKo, sT1, vKo))
    a('v_lshlrev_b32 v%d, 4, v0' % vVo)
    a('v_add_u32 v%d, s%d, v%d' % (vVo, sT1, vVo))
    a('s_lshl_b32 s%d, s%d, 5' % (sT0, sBP))
    a('s_add_u32 s%d, s%d, s%d' % (sT0, sT0, sHKV))
    a('s_lshl_b32 s%d, s%d, 19' % (sT0, sT0))
    a('s_waitcnt lgkmcnt(0)')
    srd(sK, sK_, '0x880000', 's%d' % sT0)
    srd(sV, sV_, '0x880000', 's%d' % sT0)
    def loadK(u, pace=False):
        if pace and cap is not None:
            a('s_waitcnt vmcnt(%d)' % cap)
        for T in range(4):
            for s in range(2):
                if pace and capl is not None:
                    a('s_waitcnt vmcnt(%d)' % capl)
                a('buffer_load_dwordx4 %s, v%d, %s, %s offen offset:%d nt' % (vr(vKB[u] + (T * 2 + s) * 4, 4), vKo, sr(sK, 4), ('s%d' % s4096) if T >= 2 else '0', (T & 1) * 2048 + s * 128))
        a('v_add_u32 v%d, 0x4000, v%d' % (vKo, vKo))
    def loadV_list(u, pace=False):
        l = []
        if pace and cap is not None:
            l.append('s_waitcnt vmcnt(%d)' % cap)
        for i in range(8):
            if pace and capl is not None:
                l.append('s_waitcnt vmcnt(%d)' % capl)
            l.append('buffer_load_dwordx4 %s, v%d, %s, %s offen offset:%d nt' % (vr(vVB[u] + i * 4, 4), vVo, sr(sV, 4), ('s%d' % s4096) if i >= 4 else '0', (i % 4) * 1024))
        l.append('v_add_u32 v%d, 0x4000, v%d' % (vVo, vVo))
        return l
    for n in range(4):
        if n == pre0 and bar0:
            a('s_barrier')
        if n & 1:
            for l in loadV_list(n >> 1): a(l)
        else:
            loadK(n >> 1)
    if pre0 >= 4 and bar0:
        a('s_barrier')
    a('s_mul_i32 s%d, s%d, %d' % (sSIG, sBP if sigby == 'bp' else sHKV, sigmul))
    a('s_lshr_b32 s%d, s%d, 3' % (sSIG, sSIG))
    a('s_sub_u32 s%d, %d, s%d' % (sSIG, sig0, sSIG))
    if sdry:
        a('s_mov_b32 s%d, 33' % sIT)
        a('s_mov_b64 exec, 0')
        a('s_cmp_eq_u32 s%d, 33' % sIT)
        a('s_branch L1_body')
        a.label('L1_qread')
        a('s_mov_b64 exec, -1')
    a('v_and_b32 v%d, 7, v0' % vT)
    a('v_lshrrev_b32 v%d, 5, v0' % vU)
    a('v_lshl_add_u32 v%d, v%d, 4, v%d' % (vT, vU, vT))
    a('v_mul_u32_u24 v%d, %d, v%d' % (vT, QS, vT))
    a('v_bfe_u32 v%d, v0, 3, 2' % vU)
    a('v_lshl_add_u32 v%d, v%d, 2, v%d' % (vQA, vU, vT))
    a('s_mov_b32 s%d, 32' % sIT)
    a('s_barrier')
    stamp(1)
    a.label('L1_reset')
    vB = [vO, vO + 16, 208]
    def qrd(jp):
        for j in (2 * jp, 2 * jp + 1):
            for st in range(3):
                o = (QP + st * 128 + j * 16) // 4
                a('ds_read2_b32 %s, v%d offset0:%d offset1:%d' % (vr(vB[st] + 2 * j, 2), vQA, o, o + 96))
    qrd(0); qrd(1)
    a('v_mov_b32 v%d, 0xff800000' % vM)
    a('v_mov_b32 v%d, 0xff800000' % vMC)
    a('v_mov_b32 v%d, 0' % vL)
    for jp in range(4):
        a('s_waitcnt lgkmcnt(%d)' % (6 if jp < 3 else 0))
        if jp < 2: qrd(jp + 2)
        for st in (1, 2):
            for e in range(2):
                j = 2 * jp + e
                a('v_pk_add_f32 %s, %s, %s' % (vr(vO + 2 * j, 2), vr(vO + 2 * j, 2), vr(vB[st] + 2 * j, 2)))
        for s in range(2):
            a('v_cvt_pk_bf16_f32 v%d, v%d, v%d' % (vQ + 4 * s + jp, vO + 4 * jp + s, vO + 4 * jp + 2 + s))
    a('v_add_u32 v%d, %d, v%d' % (vQA, 8 * QS, vQA))
    for i in range(32):
        a('v_mov_b32 v%d, 0' % (vO + i))
    a.label('L1_loop')
    a('s_cmp_lg_u32 s%d, s%d' % (sIT, sSIG))
    a('s_cbranch_scc1 L1_nosig')
    a('s_barrier')
    stamp(2)
    if barB:
        a('s_barrier')
        stamp(4)
    a.label('L1_nosig')
    a('s_cmp_lg_u32 s%d, 17' % sIT)
    a('s_cbranch_scc1 L1_nojump')
    a('v_add_u32 v%d, 0x780000, v%d' % (vKo, vKo))
    a('v_add_u32 v%d, 0x780000, v%d' % (vVo, vVo))
    a.label('L1_nojump')
    if sdry:
        a('s_cmp_eq_u32 s%d, 33' % sIT)
        a.label('L1_body')
    nw = [0]
    def wait24():
        if sdry:
            nw[0] += 1
            a('s_cbranch_scc1 L1_nw%d' % nw[0])
            a('s_waitcnt vmcnt(24)')
            a.label('L1_nw%d' % nw[0])
        else:
            a('s_waitcnt vmcnt(24)')
    for u in range(2):
        kb, vb = vKB[u], vVB[u]
        wait24()
        for s in range(2):
            for T in range(4):
                a('v_mfma_f32_16x16x32_bf16 %s, %s, %s, %s' % (vr(vS + 4 * T, 4), vr(kb + (T * 2 + s) * 4, 4), vr(vQ + 4 * s, 4), '0' if s == 0 else vr(vS + 4 * T, 4)))
        loadK(u, True)
        S = [vS + 2 * i for i in range(8)]
        for i in range(8):
            a('v_add_f32_dpp v%d, v%d, v%d row_ror:8 row_mask:0xf bank_mask:0xf' % (S[i], S[i] + 1, S[i]))
        a('v_max3_f32 v%d, v%d, v%d, v%d' % (vT, S[0], S[1], S[2]))
        a('v_max3_f32 v%d, v%d, v%d, v%d' % (vU, S[3], S[4], S[5]))
        a('v_max3_f32 v%d, v%d, v%d, v%d' % (vT, vT, S[6], S[7]))
        a('v_max3_f32 v%d, v%d, v%d, v%d' % (vT, vT, vU, vM))
        a('v_mov_b32 v%d, v%d' % (vU, vT))
        a('s_nop 1')
        a('v_permlane16_swap_b32 v%d, v%d' % (vT, vU))
        a('s_nop 0')
        a('v_max_f32 v%d, v%d, v%d' % (vT, vT, vU))
        a('v_mov_b32 v%d, v%d' % (vU, vT))
        a('s_nop 1')
        a('v_permlane32_swap_b32 v%d, v%d' % (vT, vU))
        a('s_nop 0')
        a('v_max_f32 v%d, v%d, v%d' % (vM, vT, vU))
        a('v_mul_f32 v%d, s%d, v%d' % (vT, sC, vM))
        a('v_sub_f32 v%d, v%d, v%d' % (vAL, vMC, vT))
        a('v_exp_f32 v%d, v%d' % (vAL, vAL))
        a('v_mov_b32 v%d, v%d' % (vMC, vT))
        for i in range(8):
            a('v_fma_f32 v%d, v%d, s%d, -v%d' % (S[i], S[i], sC, vMC))
        for i in range(8):
            a('v_exp_f32 v%d, v%d' % (S[i], S[i]))
        a('v_cmp_neq_f32 vcc, 1.0, v%d' % vAL)
        a('v_fma_f32 v%d, v%d, v%d, v%d' % (vL, vL, vAL, S[0]))
        a('v_add_f32 v%d, v%d, v%d' % (vT, S[1], S[2]))
        a('v_add_f32 v%d, v%d, v%d' % (vU, S[3], S[4]))
        a('v_add_f32 v%d, v%d, v%d' % (vL, vL, S[5]))
        a('v_add_f32 v%d, v%d, v%d' % (vT, vT, S[6]))
        a('v_add_f32 v%d, v%d, v%d' % (vU, vU, S[7]))
        for q in range(4):
            a('v_cvt_pk_bf16_f32 v%d, v%d, v%d' % (vP + q, S[2 * q], S[2 * q + 1]))
        a('v_add_f32 v%d, v%d, v%d' % (vL, vL, vT))
        a('v_add_f32 v%d, v%d, v%d' % (vL, vL, vU))
        lsk = 'L1_skip%d' % u
        if sdry:
            a('s_cbranch_scc1 L1_nsk%d' % u)
        a('s_cbranch_vccz %s' % lsk)
        if sdry:
            a.label('L1_nsk%d' % u)
        for i in range(16):
            a('v_pk_mul_f32 %s, %s, %s op_sel_hi:[1,0]' % (vr(vO + 2 * i, 2), vr(vO + 2 * i, 2), vr(vAL, 2)))
        a.label(lsk)
        wait24()
        def perms(j):
            tt = vTT + 4 * (j & 1)
            x = sPHI if (j & 1) else sPLO
            for pp in range(4):
                a('v_perm_b32 v%d, v%d, v%d, s%d' % (tt + pp, vb + (2 * pp + 1) * 4 + (j >> 1), vb + (2 * pp) * 4 + (j >> 1), x))
        def pv(j):
            a('v_mfma_f32_16x16x32_bf16 %s, %s, %s, %s' % (vr(vO + 4 * j, 4), vr(vTT + 4 * (j & 1), 4), vr(vP, 4), vr(vO + 4 * j, 4)))
        perms(0)
        for j in range(7):
            perms(j + 1)
            pv(j)
        lv = loadV_list(u, True)
        a('s_nop 0')
        pv(7)
        for l in lv: a(l)
    a('s_sub_u32 s%d, s%d, 1' % (sIT, sIT))
    a('s_and_b32 s%d, s%d, 15' % (sT0, sIT))
    a('s_cbranch_scc1 L1_loop')
    if sdry:
        a('s_cmp_eq_u32 s%d, 32' % sIT)
        a('s_cbranch_scc1 L1_qread')
    stamp(3)
    a('v_mov_b32 v%d, v%d' % (vU, vL))
    a('s_nop 1')
    a('v_permlane16_swap_b32 v%d, v%d' % (vL, vU))
    a('s_lshr_b32 s%d, s%d, 3' % (sT0, sIT))
    a('v_add_f32 v%d, v%d, v%d' % (vL, vL, vU))
    a('v_mov_b32 v%d, v%d' % (vU, vL))
    a('s_sub_u32 s%d, 2, s%d' % (sT0, sT0))
    a('s_add_u32 s%d, s%d, s%d' % (sT0, sT0, sW))
    a('v_permlane32_swap_b32 v%d, v%d' % (vL, vU))
    a('s_lshl_b32 s%d, s%d, 12' % (sT1, sT0))
    a('v_add_f32 v%d, v%d, v%d' % (vL, vL, vU))
    a('v_and_b32 v%d, 7, v0' % vT)
    a('v_lshl_add_u32 v%d, v%d, 3, v%d' % (vU, vG, vT))
    a('v_lshlrev_b32 v%d, 4, v%d' % (vU, vU))
    a('v_add_u32 v%d, s%d, v%d' % (vU, sT1, vU))
    a('s_lshl_b32 s%d, s%d, 6' % (sT0, sT0))
    a('v_lshlrev_b32 v%d, 3, v%d' % (vT, vT))
    a('v_add_u32 v%d, s%d, v%d' % (vT, sT0, vT))
    a('s_mov_b32 s%d, 0x00ff00ff' % sEX)
    a('s_cmp_lg_u32 s%d, 0' % sIT)
    a('s_mov_b32 s%d, s%d' % (sEX + 1, sEX))
    a('s_mov_b64 exec, %s' % sr(sEX, 2))
    for j in range(8):
        a('ds_write_b128 v%d, %s offset:%d' % (vU, vr(vO + 4 * j, 4), OP + j * 512))
    a('ds_write_b64 v%d, %s offset:%d' % (vT, vr(vMC, 2), ML))
    a('s_mov_b64 exec, -1')
    a('s_waitcnt lgkmcnt(0)')
    a('s_cbranch_scc1 L1_reset')
    a('s_branch L1_bar3')

    a.label('L1_helper')
    if hprio:
        a('s_setprio %d' % hprio)
    vWo_, vXo, vXL, vXR = 1, 2, 5, 6
    vHT, vXF, vRW = 32, 40, 64
    nring = 5
    vACC = 224
    sH, sKS = sT3, sIT
    a('s_cmp_ge_u32 s%d, 3' % sNB)
    a('s_cselect_b32 s%d, 1, 0' % sH)
    a('s_mul_i32 s%d, s%d, 3' % (sT0, sH))
    a('s_sub_u32 s%d, s%d, s%d' % (sT1, sNB, sT0))
    a('v_lshrrev_b32 v3, 3, v0')
    a('v_and_b32 v4, 7, v0')
    a('v_lshlrev_b32 v4, 4, v4')
    a('s_mul_i32 s%d, s%d, %d' % (sT0, sBP, 8 * 1152))
    a('s_mul_i32 s%d, s%d, 384' % (sT2, sT1))
    a('s_add_u32 s%d, s%d, s%d' % (sT0, sT0, sT2))
    a('v_mul_u32_u24 v%d, 1152, v3' % vXo)
    a('v_add3_u32 v%d, v%d, v4, s%d' % (vXo, vXo, sT0))
    if rot:
        a('s_mul_i32 s%d, s%d, 43' % (sT0, sBP))
        a('s_lshr_b32 s%d, s%d, 8' % (sT0, sT0))
        a('s_mul_i32 s%d, s%d, 6' % (sT0, sT0))
        a('s_sub_u32 s%d, s%d, s%d' % (sROT, sBP, sT0))
    else:
        a('s_mov_b32 s%d, 0' % sROT)
    a('v_lshlrev_b32 v%d, 16, v%d' % (vWo_, vG))
    a('v_lshl_add_u32 v%d, v%d, 4, v%d' % (vWo_, vR, vWo_))
    a('s_lshl_b32 s%d, s%d, 9' % (sT2, sHKV))
    a('s_lshl_b32 s%d, s%d, 8' % (sT0, sH))
    a('s_add_u32 s%d, s%d, s%d' % (sT2, sT2, sT0))
    a('s_mul_i32 s%d, s%d, %d' % (sT0, sT1, 192 * 8192))
    a('s_add_u32 s%d, s%d, s%d' % (sT2, sT2, sT0))
    a('v_add_u32 v%d, s%d, v%d' % (vWo_, sT2, vWo_))
    a('s_lshl_b32 s%d, s%d, 7' % (sSIG, sT1))
    a('s_mov_b32 s%d, s%d' % (sKS, sROT))
    a('s_waitcnt lgkmcnt(0)')
    srd(sX, sX_, '%d' % (128 * 1152))
    stamp(2, True)
    for t in range(3):
        a('buffer_load_dwordx4 %s, v%d, %s, 0 offen offset:%d %s' % (vr(vXF + 4 * t, 4), vXo, sr(sX, 4), 128 * t, xflags))
    srd(sWQ, sWQ_, '%d' % (0 if noq else 576 * 8192))
    def nextks():
        a('s_add_u32 s%d, s%d, 1' % (sKS, sKS))
        a('s_cmp_eq_u32 s%d, 6' % sKS)
        a('s_cselect_b32 s%d, 0, s%d' % (sKS, sKS))
    def qissue(u):
        a('s_lshl_b32 s%d, s%d, 18' % (sT2, sKS))
        for i in range(8):
            a('buffer_load_dwordx4 %s, v%d, %s, s%d offen %s' % (vr(vRW + 32 * (u % nring) + 4 * i, 4), vWo_, sr(sWQ, 4), sT2, wqflags))
            if i < 7:
                a('s_add_u32 s%d, s%d, 8192' % (sT2, sT2))
        if u < 5:
            nextks()
    def xstage(nout):
        a('s_mul_i32 s%d, s%d, 3200' % (sT0, sNB))
        a('v_mul_u32_u24 v%d, 400, v3' % vXL)
        a('v_add3_u32 v%d, v%d, v4, s%d' % (vXL, vXL, sT0))
        a('v_bfe_u32 v3, v0, 3, 1')
        a('v_and_b32 v4, 3, v0')
        a('v_lshl_add_u32 v3, v3, 2, v4')
        a('v_mul_u32_u24 v3, 400, v3')
        a('v_lshl_add_u32 v3, v%d, 4, v3' % vG)
        a('v_add_u32 v3, s%d, v3' % sT0)
        a('s_mov_b32 s%d, s%d' % (sT1, sROT))
        for u in range(6):
            a('s_lshl_b32 s%d, s%d, 6' % (sT0, sT1))
            a('v_add_u32 v%d, s%d, v3' % (12 + u, sT0))
            if u < 5:
                a('s_add_u32 s%d, s%d, 1' % (sT1, sT1))
                a('s_cmp_eq_u32 s%d, 6' % sT1)
                a('s_cselect_b32 s%d, 0, s%d' % (sT1, sT1))
        a('s_waitcnt vmcnt(%d)' % nout)
        for t in range(3):
            a('ds_write_b128 v%d, %s offset:%d' % (vXL, vr(vXF + 4 * t, 4), XP + 128 * t))
        a('s_waitcnt lgkmcnt(0)')
        for u in range(6):
            a('ds_read_b128 %s, v%d offset:%d' % (vr(vXF + 4 * u, 4), 12 + u, XP))
    def qcomp(u, nout):
        rb = vRW + 32 * (u % nring)
        a('s_waitcnt vmcnt(%d)%s' % (nout, ' lgkmcnt(0)' if u == 0 else ''))
        if u in (0, 2, 5): stamp({0: 4, 2: 5, 5: 6}[u], True)
        def perms(j):
            tt = vHT + 4 * (j & 1)
            x = sPHI if (j & 1) else sPLO
            for pp in range(4):
                a('v_perm_b32 v%d, v%d, v%d, s%d' % (tt + pp, rb + (2 * pp + 1) * 4 + (j >> 1), rb + (2 * pp) * 4 + (j >> 1), x))
        def mm(j):
            a('v_mfma_f32_16x16x32_bf16 %s, %s, %s, %s' % (vr(vACC + 4 * j, 4), vr(vHT + 4 * (j & 1), 4), vr(vXF + 4 * u, 4), '0' if u == 0 else vr(vACC + 4 * j, 4)))
        perms(0)
        for j in range(7):
            perms(j + 1)
            mm(j)
        a('s_nop 0')
        mm(7)
    for u in range(6):
        qissue(u)
        if u == 5:
            stamp(3, True)
        if u == bar0u:
            if bar0:
                if bar0late:
                    a('s_cmp_lt_u32 s%d, 6' % sW)
                    a('s_cbranch_scc1 L1_nb0')
                a('s_barrier')
                if bar0late:
                    a.label('L1_nb0')
        if u == qpipe:
            xstage(8 * (qpipe + 1))
        if u >= qpipe:
            qcomp(u - qpipe, 8 * qpipe)
    for u in range(6 - qpipe, 6):
        qcomp(u, 40 - 8 * u)
    a('v_mbcnt_lo_u32_b32 v%d, -1, 0' % vRW)
    a('v_mbcnt_hi_u32_b32 v%d, -1, v%d' % (vRW, vRW))
    a('v_and_b32 v%d, 31, v%d' % (vRW + 1, vRW))
    a('v_mul_u32_u24 v%d, %d, v%d' % (vRW + 1, QS, vRW + 1))
    a('v_lshrrev_b32 v%d, 5, v%d' % (vRW + 2, vRW))
    a('v_mul_u32_u24 v%d, 384, v%d' % (vRW + 2, vRW + 2))
    a('v_add_u32 v%d, v%d, v%d' % (vRW + 1, vRW + 1, vRW + 2))
    a('v_add_u32 v%d, s%d, v%d' % (vRW + 1, sSIG, vRW + 1))
    a('s_mov_b32 s%d, 0x0f0f0f0f' % sEX)
    a('s_cmp_eq_u32 s%d, 0' % sH)
    a('s_cselect_b32 s%d, s%d, 0xf0f0f0f0' % (sEX, sEX))
    a('s_mov_b32 s%d, s%d' % (sEX + 1, sEX))
    a('s_mov_b64 exec, %s' % sr(sEX, 2))
    for j in range(8):
        a('ds_write_b128 v%d, %s offset:%d' % (vRW + 1, vr(vACC + 4 * j, 4), QP + j * 16))
    a('s_mov_b64 exec, -1')
    a('s_waitcnt lgkmcnt(0)')
    stamp(1)
    if bar0 and bar0late:
        a('s_cmp_ge_u32 s%d, 6' % sW)
        a('s_cbranch_scc1 L1_nb1')
        a('s_barrier')
        a.label('L1_nb1')
    a('s_barrier')

    vWOo = 3
    srd(sWO, sWO_, '%d' % (4096 * 1152))
    a('v_lshrrev_b32 v1, 4, v%d' % vRW)
    a('v_and_b32 v2, 15, v%d' % vRW)
    a('v_mul_u32_u24 v1, 2304, v1')
    a('v_mul_u32_u24 v2, 12, v2')
    a('s_mul_i32 s%d, s%d, 192' % (sT0, sNB))
    a('s_mul_i32 s%d, s%d, %d' % (sT1, sHKV, 256 * 1152))
    a('s_add_u32 s%d, s%d, s%d' % (sT0, sT0, sT1))
    a('v_add3_u32 v%d, v1, v2, s%d' % (vWOo, sT0))
    a('s_and_b32 s%d, s%d, %d' % (sROT, sBP, 7 if worot else 0))
    if woprio is not None:
        a('s_setprio %d' % woprio)
    a('s_barrier')
    stamp(2)
    def rawq(n, i): return 8 * (7 - n) + i
    def fragq(n, t): return 58 - 6 * n + t
    if not nowo:
        for n in range(8):
            a('s_add_u32 s%d, s%d, %d' % (sT0, sROT, n))
            a('s_and_b32 s%d, s%d, 7' % (sT0, sT0))
            a('s_mul_i32 s%d, s%d, %d' % (sT0, sT0, 32 * 1152))
            for i3 in range(4):
                for e in range(2):
                    i = i3 + 4 * e
                    if wowin is not None:
                        a('s_waitcnt vmcnt(%d)' % (wowin - 1))
                    elif n == 7 and i3 == 3 and e == 1:
                        a('s_waitcnt vmcnt(62)')
                    a('buffer_load_dwordx3 %s, v%d, %s, s%d offen offset:%d %s' % (vr(4 * rawq(n, i), 3), vWOo, sr(sWO, 4), sT0, 1152 * e, woflags))
                if i3 < 3:
                    a('s_add_u32 s%d, s%d, %d' % (sT0, sT0, 8 * 1152))
        stamp(3)
    if barB:
        a('s_barrier')
    if not nowo:
        for n in range(8):
            a('s_waitcnt vmcnt(%d)' % (56 - 8 * n))
            moves = []
            ntmp = 0
            for t in range(6):
                fq = fragq(n, t)
                direct = fq >= 8 * (8 - n)
                x = sPHI if (t & 1) else sPLO
                for pp in range(4):
                    if direct:
                        dst = 4 * fq + pp
                    else:
                        dst = 4 * ntmp + 3; ntmp += 1
                        moves.append((4 * fq + pp, dst))
                    a('v_perm_b32 v%d, v%d, v%d, s%d' % (dst, 4 * rawq(n, 2 * pp + 1) + (t >> 1), 4 * rawq(n, 2 * pp) + (t >> 1), x))
            for d, s_ in moves:
                a('v_mov_b32 v%d, v%d' % (d, s_))
    stamp(4)
    a('v_mbcnt_lo_u32_b32 v0, -1, 0')
    a('v_mbcnt_hi_u32_b32 v0, -1, v0')
    vDA, vOFR = 8, 32
    a('v_lshrrev_b32 v5, 4, v0')
    a('v_lshlrev_b32 v5, 7, v5')
    a('v_and_b32 v2, 7, v0')
    a('v_lshl_add_u32 v5, v2, 4, v5')
    for n in range(8):
        a('s_add_u32 s%d, s%d, %d' % (sT0, sROT, n))
        a('s_and_b32 s%d, s%d, 7' % (sT0, sT0))
        a('s_lshl_b32 s%d, s%d, 9' % (sT0, sT0))
        a('v_add_u32 v%d, s%d, v5' % (vOFR + 4 * n, sT0))
    a.label('L1_bar3')
    a('s_and_b32 s%d, s%d, 3' % (sT0, sW))
    a('s_lshl_b32 s%d, s%d, 10' % (sT0, sT0))
    a('s_lshr_b32 s%d, s%d, 2' % (sT1, sW))
    a('s_lshl_b32 s%d, s%d, 13' % (sT2, sT1))
    a('s_add_u32 s%d, s%d, s%d' % (sT0, sT0, sT2))
    a('v_lshlrev_b32 v1, 4, v0')
    a('v_add_u32 v1, s%d, v1' % sT0)
    a('v_and_b32 v2, 7, v0')
    a('v_lshlrev_b32 v3, 3, v2')
    a('s_lshl_b32 s%d, s%d, 7' % (sT2, sT1))
    a('v_add_u32 v3, s%d, v3' % sT2)
    a('v_lshrrev_b32 v4, 2, v2')
    a('v_bfe_u32 v6, v0, 3, 2')
    a('v_lshl_add_u32 v4, v4, 2, v6')
    a('v_lshlrev_b32 v4, 9, v4')
    a('v_and_b32 v6, 3, v0')
    a('v_lshl_add_u32 v4, v6, 4, v4')
    a('v_lshrrev_b32 v6, 5, v0')
    a('v_lshl_add_u32 v4, v6, 3, v4')
    a('s_and_b32 s%d, s%d, 3' % (sT0, sW))
    a('s_lshl_b32 s%d, s%d, 7' % (sT0, sT0))
    a('s_lshl_b32 s%d, s%d, 6' % (sT2, sT1))
    a('s_add_u32 s%d, s%d, s%d' % (sT0, sT0, sT2))
    a('v_add_u32 v4, s%d, v4' % sT0)
    a('s_lshl_b32 s%d, s%d, 4' % (sT0, sBP))
    a('s_add_u32 s%d, s%d, s%d' % (sT0, sT0, sHKV))
    a('s_mul_i32 s%d, s%d, %d' % (sT0, sT0, PSZ))
    a('s_add_u32 s%d, s%d, %d' % (sT0, sT0, POFF))
    srd(sP, sWS_, '%d' % PSZ, 's%d' % sT0)
    a('s_mul_i32 s%d, s%d, 3072' % (sT2, sNB))
    a('s_barrier')
    stamp(5)
    a('ds_read_b64 v[8:9], v3 offset:%d' % ML)
    a('ds_read_b64 v[10:11], v3 offset:%d' % (ML + 64))
    a('ds_read_b128 v[12:15], v1 offset:%d' % OP)
    a('ds_read_b128 v[16:19], v1 offset:%d' % (OP + 4096))
    a('s_waitcnt lgkmcnt(2)')
    a('v_max_f32 v20, v8, v10')
    a('v_sub_f32 v8, v8, v20')
    a('v_sub_f32 v10, v10, v20')
    a('v_exp_f32 v8, v8')
    a('v_exp_f32 v10, v10')
    a('s_nop 0')
    a('v_mul_f32 v9, v8, v9')
    a('v_fma_f32 v9, v10, v11, v9')
    a('v_rcp_f32 v9, v9')
    a('s_nop 0')
    a('v_mul_f32 v8, v8, v9')
    a('v_mul_f32 v10, v10, v9')
    a('s_waitcnt lgkmcnt(0)')
    for q in range(4):
        a('v_mul_f32 v%d, v8, v%d' % (12 + q, 12 + q))
    for q in range(4):
        a('v_fma_f32 v%d, v10, v%d, v%d' % (12 + q, 16 + q, 12 + q))
    a('v_cvt_pk_bf16_f32 v20, v12, v13')
    a('v_cvt_pk_bf16_f32 v21, v14, v15')
    a('ds_write_b64 v4, v[20:21] offset:%d' % OF)
    a('s_waitcnt lgkmcnt(0)')
    a('s_barrier')
    stamp(6)
    a('s_cmp_ge_u32 s%d, 2' % sW)
    a('s_cbranch_scc1 L1_op')
    a('s_waitcnt vmcnt(0)')
    a('s_branch L1_fin')
    a.label('L1_op')
    for n in range(8):
        a('ds_read_b128 %s, v%d offset:%d' % (vr(vOFR + 4 * n, 4), vOFR + 4 * n, OF))
    for n in range(8):
        a('s_waitcnt lgkmcnt(%d)' % (7 - n))
        for t in range(6):
            a('v_mfma_f32_16x16x32_bf16 %s, %s, %s, %s' % (vr(vDA + 4 * t, 4), vr(4 * fragq(n, t), 4), vr(vOFR + 4 * n, 4), '0' if n == 0 else vr(vDA + 4 * t, 4)))
    a('s_mov_b32 s%d, 0x00ff00ff' % sEX)
    a('s_mov_b32 s%d, 0x00ff00ff' % (sEX + 1))
    a('s_mov_b64 exec, %s' % sr(sEX, 2))
    a('s_nop 0')
    for j in range(6):
        a('buffer_store_dwordx4 %s, v5, %s, s%d offen offset:%d %s' % (vr(vDA + 4 * j, 4), sr(sP, 4), sT2, j * 512, pflags))
        if j < 5: a('s_nop 0')
    a('s_mov_b64 exec, -1')
    a.label('L1_fin')
    if dbg:
        a('s_waitcnt vmcnt(0)')
        stamp(7)
        a('s_getreg_b32 s%d, hwreg(HW_REG_XCC_ID, 0, 4)' % sT1)
        a('s_waitcnt lgkmcnt(0)')
        a('s_mov_b64 exec, 1')
        a('v_mov_b32 v1, 0')
        def amax(word, sreg, neg=False):
            a(('v_not_b32 v2, s%d' if neg else 'v_mov_b32 v2, s%d') % sreg)
            a('global_atomic_umax v1, v2, %s offset:%d' % (sr(sDBG_, 2), 4 * word))
            a('s_nop 1')
        amax(0, sST, True)
        amax(3, sST + 14)
        amax(4, sST + 14, True)
        a('s_cmp_lg_u32 s%d, 0' % sW)
        a('s_cbranch_scc1 L1_end')
        amax(1, sST + 2)
        amax(2, sST + 6)
        amax(5, sST + 2, True)
        a('s_lshl_b32 s%d, 1, s%d' % (sT1, sT1))
        a('s_and_b32 s%d, s2, 7' % sT0)
        a('s_lshl_b32 s%d, s%d, 2' % (sT0, sT0))
        a('v_mov_b32 v1, s%d' % sT0)
        a('v_mov_b32 v2, s%d' % sT1)
        a('global_atomic_or v1, v2, %s offset:32' % sr(sDBG_, 2))
    elif stamps:
        a('s_waitcnt vmcnt(0)')
        stamp(7)
        a('s_waitcnt lgkmcnt(0)')
        a('s_lshl_b32 s%d, s2, 3' % sT0)
        a('s_add_u32 s%d, s%d, s%d' % (sT0, sT0, sW))
        a('s_lshl_b32 s%d, s%d, 6' % (sT0, sT0))
        a('v_mov_b32 v1, s%d' % sT0)
        for k in range(16):
            a('v_mov_b32 v%d, s%d' % (8 + k, sST + k))
        a('s_mov_b64 exec, 1')
        for k in range(4):
            a('global_store_dwordx4 v1, %s, %s offset:%d' % (vr(8 + 4 * k, 4), sr(sWS_, 2), 16 * k))
    a.label('L1_end')
    a('s_endpgm')
    k1 = a.text()

    a = Asm()
    a('s_cmp_ge_u32 s2, 18')
    a('s_cbranch_scc1 L2_end')
    a('s_load_dwordx2 s[4:5], s[0:1], 40')
    a('s_load_dwordx2 s[6:7], s[0:1], 56')
    if dbg:
        a('s_load_dwordx2 s[22:23], s[0:1], 48')
        a('s_memrealtime s[24:25]')
    a('v_lshlrev_b32 v1, 4, v0')
    a('s_mul_i32 s16, s3, %d' % (16 * PSZ))
    a('s_lshl_b32 s17, s2, 10')
    a('s_add_u32 s16, s16, s17')
    a('s_add_u32 s16, s16, %d' % POFF)
    a('s_mul_i32 s18, s2, 21846')
    a('s_lshr_b32 s18, s18, 16')
    a('s_mul_i32 s19, s18, 3')
    a('s_sub_u32 s19, s2, s19')
    a('s_mul_i32 s18, s18, 192')
    a('s_lshl_b32 s19, s19, 2')
    a('s_add_u32 s18, s18, s19')
    a('s_mul_i32 s19, s3, %d' % (8 * 1152))
    a('s_add_u32 s18, s18, s19')
    a('v_and_b32 v2, 7, v0')
    a('v_mul_u32_u24 v2, 1152, v2')
    a('v_bfe_u32 v3, v0, 3, 2')
    a('v_mul_u32_u24 v3, 48, v3')
    a('v_add_u32 v2, v2, v3')
    a('v_lshrrev_b32 v3, 5, v0')
    a('v_lshl_add_u32 v2, v3, 1, v2')
    a('v_add_u32 v2, s18, v2')
    a('s_waitcnt lgkmcnt(0)')
    a('s_add_u32 s8, s6, s16'); a('s_addc_u32 s9, s7, 0'); a('s_mov_b32 s10, %d' % (16 * PSZ)); a('s_mov_b32 s11, 0x20000')
    a('s_mov_b32 s12, s4'); a('s_mov_b32 s13, s5'); a('s_mov_b32 s14, %d' % (128 * 1152)); a('s_mov_b32 s15, 0x20000')
    for h in range(16):
        if h:
            a('s_mov_b32 s20, %d' % (h * PSZ))
        a('buffer_load_dwordx4 %s, v1, s[8:11], %s offen' % (vr(4 + 4 * h, 4), 's20' if h else '0'))
    for h in range(1, 16):
        a('s_waitcnt vmcnt(%d)' % (15 - h))
        a('v_pk_add_f32 v[4:5], v[4:5], %s' % vr(4 + 4 * h, 2))
        a('v_pk_add_f32 v[6:7], v[6:7], %s' % vr(6 + 4 * h, 2))
    a('v_cvt_pk_bf16_f32 v8, v4, v5')
    a('v_cvt_pk_bf16_f32 v9, v6, v7')
    a('buffer_store_short v8, v2, s[12:15], 0 offen')
    a('buffer_store_short_d16_hi v8, v2, s[12:15], 0 offen offset:12')
    a('buffer_store_short v9, v2, s[12:15], 0 offen offset:24')
    a('buffer_store_short_d16_hi v9, v2, s[12:15], 0 offen offset:36')
    if dbg:
        a('s_waitcnt vmcnt(0)')
        a('s_memrealtime s[26:27]')
        a('s_sub_u32 s22, s22, 512')
        a('s_subb_u32 s23, s23, 0')
        a('s_waitcnt lgkmcnt(0)')
        a('s_mov_b64 exec, 1')
        a('v_mov_b32 v1, 0')
        a('v_not_b32 v2, s24')
        a('v_mov_b32 v3, s26')
        a('global_atomic_umax v1, v2, s[22:23] offset:24')
        a('global_atomic_umax v1, v3, s[22:23] offset:28')
    a.label('L2_end')
    a('s_endpgm')
    k2 = a.text()

    txt = HEADER
    txt += '; @launch kernel=%s grid=(256,1,1) block=(512,1,1) lds=%d\n' % (K1, LDS_BYTES)
    txt += '; @launch kernel=%s grid=(18,16,1) block=(64,1,1) lds=0\n' % K2
    txt += '.amdgcn_target "amdgcn-amd-amdhsa--gfx950"\n.text\n'
    txt += kernel_begin(K1) + k1 + kernel_begin(K2) + k2
    txt += '.section .rodata,"a"\n' + kernel_desc(K1, 256, 96) + kernel_desc(K2, 72, 32, wgy=True)
    return txt

if __name__ == '__main__':
    open('g3.s', 'w').write(gen())
    open('g3_st.s', 'w').write(gen(stamps=True))
```

```python
from gqa3 import gen
B='bench/'
import sys
base = dict(bar0=True, pre0=1, qpipe=2, wowin=4)
V = {
 'o_a': dict(base, bar0late=True, dbg=True),
 'o_b': dict(base, bar0late=True, cap=8, dbg=True),
}
for k, v in V.items():
    open(B + k + '.s', 'w').write(gen(stamps=True, **v))
print(' '.join(V))
```

```python
import sys, struct, math
from asmlib import *

def f32bits(x):
    return struct.unpack('<I', struct.pack('<f', x))[0]

K1 = 'gqa_main_kernel'
K2 = 'gqa_reduce_kernel'
POFF = 0x100000
PSZ = 18432

QP = 0
QS = 784
OP = 25088
ML = OP + 16384
OF = ML + 512
LDS_BYTES = OF + 4096
XP = OP

def gen(stamps=False, wqflags='nt', woflags='nt', xflags='nt', hprio=2, pflags='', pre0=4, bar0=False,
        sig0=30, sigmul=0, sigby='bp', nowo=False, noq=False, rot=True, sdry=False, hdry=False, hmap=1, barB=False, qst=False, qcont=False, qpipe=2, nwg=256, qpat=0, qtwice=False, kpat=0, cap=None, capl=None, wowin=None, woprio=None, worot=False, bar0late=False, bar0u=5, dbg=False):
    a = Asm()
    sX_, sK_, sV_, sWQ_, sWO_, sOUT_, sDBG_, sWS_ = 4, 6, 8, 10, 12, 14, 16, 18
    sK, sV, sWQ, sWO, sX, sP = 20, 24, 28, 32, 36, 40
    sPLO, sPHI, sC, sW, sHKV, sBP, sIT, sSIG, s4096 = 44, 45, 46, 47, 48, 49, 50, 51, 52
    sT0, sT1, sT2, sT3 = 53, 54, 55, 56
    sNB, sROT = 57, 58
    sEX = 60
    sST = 64
    def stamp(k, q=False):
        if qst and k in (2, 3, 4, 5, 6) and not q:
            return
        if q and not qst:
            return
        if stamps:
            a('s_memrealtime %s' % sr(sST + 2 * k, 2))
    def srd(dst, base, nrec, offs=None):
        if offs is None:
            a('s_mov_b32 s%d, s%d' % (dst, base)); a('s_mov_b32 s%d, s%d' % (dst + 1, base + 1))
        else:
            a('s_add_u32 s%d, s%d, %s' % (dst, base, offs)); a('s_addc_u32 s%d, s%d, 0' % (dst + 1, base + 1))
        a('s_mov_b32 s%d, %s' % (dst + 2, nrec)); a('s_mov_b32 s%d, 0x20000' % (dst + 3))

    a('s_cmp_ge_u32 s2, %d' % nwg)
    a('s_cbranch_scc1 L1_end')
    a('s_load_dwordx16 s[4:19], s[0:1], 0')
    if stamps:
        for k in range(1, 8):
            a('s_mov_b64 %s, 0' % sr(sST + 2 * k, 2))
    stamp(0)
    vR, vG, vSIG = 9, 10, 11
    a('v_lshrrev_b32 v1, 6, v0')
    a('v_and_b32 v0, 63, v0')
    a('v_and_b32 v%d, 15, v0' % vR)
    a('v_readfirstlane_b32 s%d, v1' % sW)
    a('v_lshrrev_b32 v%d, 4, v0' % vG)
    a('s_bfe_u32 s%d, s2, 0x%x' % (sHKV, ((4 - hmap) << 16) | (hmap - 1)))
    a('s_lshl_b32 s%d, s%d, %d' % (sHKV, sHKV, hmap))
    a('s_bfe_u32 s%d, s2, 0x%x' % (sT0, (hmap << 16) | 3))
    a('s_add_u32 s%d, s%d, s%d' % (sHKV, sHKV, sT0))
    a('s_lshr_b32 s%d, s2, %d' % (sBP, 3 + hmap))
    if hmap > 1:
        a('s_lshl_b32 s%d, s%d, %d' % (sBP, sBP, hmap - 1))
        a('s_and_b32 s%d, s2, %d' % (sT0, (1 << (hmap - 1)) - 1))
        a('s_add_u32 s%d, s%d, s%d' % (sBP, sBP, sT0))
    a('s_mov_b32 s%d, 0x05040100' % sPLO)
    a('s_mov_b32 s%d, 0x07060302' % sPHI)
    a('s_sub_u32 s%d, s%d, 2' % (sNB, sW))
    a('s_cmp_ge_u32 s%d, 2' % sW)
    a('s_cbranch_scc1 L1_helper')

    vKo, vVo, vM, vMC, vL, vAL, vT, vU = 1, 2, 3, 4, 5, 6, 7, 8
    vS, vP, vTT, vQ, vO = 12, 28, 32, 40, 48
    vQA = 11
    vKB = [80, 144]; vVB = [112, 176]
    a('s_mov_b32 s%d, 0x%08x' % (sC, f32bits(math.log2(math.e) / math.sqrt(128.0))))
    a('s_movk_i32 s%d, 0x1000' % s4096)
    a('s_lshl_b32 s%d, s%d, 13' % (sT1, sW))
    a('v_bfe_u32 v%d, v0, 1, 1' % vKo)
    a('v_bfe_u32 v%d, v0, 2, 2' % vT)
    a('v_lshl_add_u32 v%d, v%d, 2, v%d' % (vKo, vKo, vT))
    a('v_lshlrev_b32 v%d, 8, v%d' % (vKo, vKo))
    a('v_lshl_add_u32 v%d, v%d, 5, v%d' % (vKo, vG, vKo))
    a('v_and_b32 v%d, 1, v0' % vT)
    a('v_lshl_add_u32 v%d, v%d, 4, v%d' % (vKo, vT, vKo))
    a('v_add_u32 v%d, s%d, v%d' % (vKo, sT1, vKo))
    a('v_lshlrev_b32 v%d, 4, v0' % vVo)
    a('v_add_u32 v%d, s%d, v%d' % (vVo, sT1, vVo))
    a('s_lshl_b32 s%d, s%d, 5' % (sT0, sBP))
    a('s_add_u32 s%d, s%d, s%d' % (sT0, sT0, sHKV))
    a('s_lshl_b32 s%d, s%d, 19' % (sT0, sT0))
    a('s_waitcnt lgkmcnt(0)')
    srd(sK, sK_, '0x880000', 's%d' % sT0)
    srd(sV, sV_, '0x880000', 's%d' % sT0)
    def loadK(u, pace=False):
        if pace and cap is not None:
            a('s_waitcnt vmcnt(%d)' % cap)
        for T in range(4):
            for s in range(2):
                if pace and capl is not None:
                    a('s_waitcnt vmcnt(%d)' % capl)
                a('buffer_load_dwordx4 %s, v%d, %s, %s offen offset:%d nt' % (vr(vKB[u] + (T * 2 + s) * 4, 4), vKo, sr(sK, 4), ('s%d' % s4096) if T >= 2 else '0', (T & 1) * 2048 + s * 128))
        a('v_add_u32 v%d, 0x4000, v%d' % (vKo, vKo))
    def loadV_list(u, pace=False):
        l = []
        if pace and cap is not None:
            l.append('s_waitcnt vmcnt(%d)' % cap)
        for i in range(8):
            if pace and capl is not None:
                l.append('s_waitcnt vmcnt(%d)' % capl)
            l.append('buffer_load_dwordx4 %s, v%d, %s, %s offen offset:%d nt' % (vr(vVB[u] + i * 4, 4), vVo, sr(sV, 4), ('s%d' % s4096) if i >= 4 else '0', (i % 4) * 1024))
        l.append('v_add_u32 v%d, 0x4000, v%d' % (vVo, vVo))
        return l
    for n in range(4):
        if n == pre0 and bar0:
            a('s_barrier')
        if n & 1:
            for l in loadV_list(n >> 1): a(l)
        else:
            loadK(n >> 1)
    if pre0 >= 4 and bar0:
        a('s_barrier')
    a('s_mul_i32 s%d, s%d, %d' % (sSIG, sBP if sigby == 'bp' else sHKV, sigmul))
    a('s_lshr_b32 s%d, s%d, 3' % (sSIG, sSIG))
    a('s_sub_u32 s%d, %d, s%d' % (sSIG, sig0, sSIG))
    if sdry:
        a('s_mov_b32 s%d, 33' % sIT)
        a('s_mov_b64 exec, 0')
        a('s_cmp_eq_u32 s%d, 33' % sIT)
        a('s_branch L1_body')
        a.label('L1_qread')
        a('s_mov_b64 exec, -1')
    a('v_and_b32 v%d, 7, v0' % vT)
    a('v_lshrrev_b32 v%d, 5, v0' % vU)
    a('v_lshl_add_u32 v%d, v%d, 4, v%d' % (vT, vU, vT))
    a('v_mul_u32_u24 v%d, %d, v%d' % (vT, QS, vT))
    a('v_bfe_u32 v%d, v0, 3, 2' % vU)
    a('v_lshl_add_u32 v%d, v%d, 2, v%d' % (vQA, vU, vT))
    a('s_mov_b32 s%d, 32' % sIT)
    a('s_barrier')
    stamp(1)
    a.label('L1_reset')
    vB = [vO, vO + 16, 208]
    def qrd(jp):
        for j in (2 * jp, 2 * jp + 1):
            for st in range(3):
                o = (QP + st * 128 + j * 16) // 4
                a('ds_read2_b32 %s, v%d offset0:%d offset1:%d' % (vr(vB[st] + 2 * j, 2), vQA, o, o + 96))
    qrd(0); qrd(1)
    a('v_mov_b32 v%d, 0xff800000' % vM)
    a('v_mov_b32 v%d, 0xff800000' % vMC)
    a('v_mov_b32 v%d, 0' % vL)
    for jp in range(4):
        a('s_waitcnt lgkmcnt(%d)' % (6 if jp < 3 else 0))
        if jp < 2: qrd(jp + 2)
        for st in (1, 2):
            for e in range(2):
                j = 2 * jp + e
                a('v_pk_add_f32 %s, %s, %s' % (vr(vO + 2 * j, 2), vr(vO + 2 * j, 2), vr(vB[st] + 2 * j, 2)))
        for s in range(2):
            a('v_cvt_pk_bf16_f32 v%d, v%d, v%d' % (vQ + 4 * s + jp, vO + 4 * jp + s, vO + 4 * jp + 2 + s))
    a('v_add_u32 v%d, %d, v%d' % (vQA, 8 * QS, vQA))
    for i in range(32):
        a('v_mov_b32 v%d, 0' % (vO + i))
    a.label('L1_loop')
    a('s_cmp_lg_u32 s%d, s%d' % (sIT, sSIG))
    a('s_cbranch_scc1 L1_nosig')
    a('s_barrier')
    stamp(2)
    if barB:
        a('s_barrier')
        stamp(4)
    a.label('L1_nosig')
    a('s_cmp_lg_u32 s%d, 17' % sIT)
    a('s_cbranch_scc1 L1_nojump')
    a('v_add_u32 v%d, 0x780000, v%d' % (vKo, vKo))
    a('v_add_u32 v%d, 0x780000, v%d' % (vVo, vVo))
    a.label('L1_nojump')
    if sdry:
        a('s_cmp_eq_u32 s%d, 33' % sIT)
        a.label('L1_body')
    nw = [0]
    def wait24():
        if sdry:
            nw[0] += 1
            a('s_cbranch_scc1 L1_nw%d' % nw[0])
            a('s_waitcnt vmcnt(24)')
            a.label('L1_nw%d' % nw[0])
        else:
            a('s_waitcnt vmcnt(24)')
    for u in range(2):
        kb, vb = vKB[u], vVB[u]
        wait24()
        for s in range(2):
            for T in range(4):
                a('v_mfma_f32_16x16x32_bf16 %s, %s, %s, %s' % (vr(vS + 4 * T, 4), vr(kb + (T * 2 + s) * 4, 4), vr(vQ + 4 * s, 4), '0' if s == 0 else vr(vS + 4 * T, 4)))
        loadK(u, True)
        S = [vS + 2 * i for i in range(8)]
        for i in range(8):
            a('v_add_f32_dpp v%d, v%d, v%d row_ror:8 row_mask:0xf bank_mask:0xf' % (S[i], S[i] + 1, S[i]))
        a('v_max3_f32 v%d, v%d, v%d, v%d' % (vT, S[0], S[1], S[2]))
        a('v_max3_f32 v%d, v%d, v%d, v%d' % (vU, S[3], S[4], S[5]))
        a('v_max3_f32 v%d, v%d, v%d, v%d' % (vT, vT, S[6], S[7]))
        a('v_max3_f32 v%d, v%d, v%d, v%d' % (vT, vT, vU, vM))
        a('v_mov_b32 v%d, v%d' % (vU, vT))
        a('s_nop 1')
        a('v_permlane16_swap_b32 v%d, v%d' % (vT, vU))
        a('s_nop 0')
        a('v_max_f32 v%d, v%d, v%d' % (vT, vT, vU))
        a('v_mov_b32 v%d, v%d' % (vU, vT))
        a('s_nop 1')
        a('v_permlane32_swap_b32 v%d, v%d' % (vT, vU))
        a('s_nop 0')
        a('v_max_f32 v%d, v%d, v%d' % (vM, vT, vU))
        a('v_mul_f32 v%d, s%d, v%d' % (vT, sC, vM))
        a('v_sub_f32 v%d, v%d, v%d' % (vAL, vMC, vT))
        a('v_exp_f32 v%d, v%d' % (vAL, vAL))
        a('v_mov_b32 v%d, v%d' % (vMC, vT))
        for i in range(8):
            a('v_fma_f32 v%d, v%d, s%d, -v%d' % (S[i], S[i], sC, vMC))
        for i in range(8):
            a('v_exp_f32 v%d, v%d' % (S[i], S[i]))
        a('v_cmp_neq_f32 vcc, 1.0, v%d' % vAL)
        a('v_fma_f32 v%d, v%d, v%d, v%d' % (vL, vL, vAL, S[0]))
        a('v_add_f32 v%d, v%d, v%d' % (vT, S[1], S[2]))
        a('v_add_f32 v%d, v%d, v%d' % (vU, S[3], S[4]))
        a('v_add_f32 v%d, v%d, v%d' % (vL, vL, S[5]))
        a('v_add_f32 v%d, v%d, v%d' % (vT, vT, S[6]))
        a('v_add_f32 v%d, v%d, v%d' % (vU, vU, S[7]))
        for q in range(4):
            a('v_cvt_pk_bf16_f32 v%d, v%d, v%d' % (vP + q, S[2 * q], S[2 * q + 1]))
        a('v_add_f32 v%d, v%d, v%d' % (vL, vL, vT))
        a('v_add_f32 v%d, v%d, v%d' % (vL, vL, vU))
        lsk = 'L1_skip%d' % u
        if sdry:
            a('s_cbranch_scc1 L1_nsk%d' % u)
        a('s_cbranch_vccz %s' % lsk)
        if sdry:
            a.label('L1_nsk%d' % u)
        for i in range(16):
            a('v_pk_mul_f32 %s, %s, %s op_sel_hi:[1,0]' % (vr(vO + 2 * i, 2), vr(vO + 2 * i, 2), vr(vAL, 2)))
        a.label(lsk)
        wait24()
        def perms(j):
            tt = vTT + 4 * (j & 1)
            x = sPHI if (j & 1) else sPLO
            for pp in range(4):
                a('v_perm_b32 v%d, v%d, v%d, s%d' % (tt + pp, vb + (2 * pp + 1) * 4 + (j >> 1), vb + (2 * pp) * 4 + (j >> 1), x))
        def pv(j):
            a('v_mfma_f32_16x16x32_bf16 %s, %s, %s, %s' % (vr(vO + 4 * j, 4), vr(vTT + 4 * (j & 1), 4), vr(vP, 4), vr(vO + 4 * j, 4)))
        perms(0)
        for j in range(7):
            perms(j + 1)
            pv(j)
        lv = loadV_list(u, True)
        a('s_nop 0')
        pv(7)
        for l in lv: a(l)
    a('s_sub_u32 s%d, s%d, 1' % (sIT, sIT))
    a('s_and_b32 s%d, s%d, 15' % (sT0, sIT))
    a('s_cbranch_scc1 L1_loop')
    if sdry:
        a('s_cmp_eq_u32 s%d, 32' % sIT)
        a('s_cbranch_scc1 L1_qread')
    stamp(3)
    a('v_mov_b32 v%d, v%d' % (vU, vL))
    a('s_nop 1')
    a('v_permlane16_swap_b32 v%d, v%d' % (vL, vU))
    a('s_lshr_b32 s%d, s%d, 3' % (sT0, sIT))
    a('v_add_f32 v%d, v%d, v%d' % (vL, vL, vU))
    a('v_mov_b32 v%d, v%d' % (vU, vL))
    a('s_sub_u32 s%d, 2, s%d' % (sT0, sT0))
    a('s_add_u32 s%d, s%d, s%d' % (sT0, sT0, sW))
    a('v_permlane32_swap_b32 v%d, v%d' % (vL, vU))
    a('s_lshl_b32 s%d, s%d, 12' % (sT1, sT0))
    a('v_add_f32 v%d, v%d, v%d' % (vL, vL, vU))
    a('v_and_b32 v%d, 7, v0' % vT)
    a('v_lshl_add_u32 v%d, v%d, 3, v%d' % (vU, vG, vT))
    a('v_lshlrev_b32 v%d, 4, v%d' % (vU, vU))
    a('v_add_u32 v%d, s%d, v%d' % (vU, sT1, vU))
    a('s_lshl_b32 s%d, s%d, 6' % (sT0, sT0))
    a('v_lshlrev_b32 v%d, 3, v%d' % (vT, vT))
    a('v_add_u32 v%d, s%d, v%d' % (vT, sT0, vT))
    a('s_mov_b32 s%d, 0x00ff00ff' % sEX)
    a('s_cmp_lg_u32 s%d, 0' % sIT)
    a('s_mov_b32 s%d, s%d' % (sEX + 1, sEX))
    a('s_mov_b64 exec, %s' % sr(sEX, 2))
    for j in range(8):
        a('ds_write_b128 v%d, %s offset:%d' % (vU, vr(vO + 4 * j, 4), OP + j * 512))
    a('ds_write_b64 v%d, %s offset:%d' % (vT, vr(vMC, 2), ML))
    a('s_mov_b64 exec, -1')
    a('s_waitcnt lgkmcnt(0)')
    a('s_cbranch_scc1 L1_reset')
    a('s_branch L1_bar3')

    a.label('L1_helper')
    if hprio:
        a('s_setprio %d' % hprio)
    vWo_, vXo, vXL, vXR = 1, 2, 5, 6
    vHT, vXF, vRW = 32, 40, 64
    nring = 5
    vACC = 224
    sH, sKS = sT3, sIT
    a('s_cmp_ge_u32 s%d, 3' % sNB)
    a('s_cselect_b32 s%d, 1, 0' % sH)
    a('s_mul_i32 s%d, s%d, 3' % (sT0, sH))
    a('s_sub_u32 s%d, s%d, s%d' % (sT1, sNB, sT0))
    a('v_lshrrev_b32 v3, 3, v0')
    a('v_and_b32 v4, 7, v0')
    a('v_lshlrev_b32 v4, 4, v4')
    a('s_mul_i32 s%d, s%d, %d' % (sT0, sBP, 8 * 1152))
    a('s_mul_i32 s%d, s%d, 384' % (sT2, sT1))
    a('s_add_u32 s%d, s%d, s%d' % (sT0, sT0, sT2))
    a('v_mul_u32_u24 v%d, 1152, v3' % vXo)
    a('v_add3_u32 v%d, v%d, v4, s%d' % (vXo, vXo, sT0))
    if rot:
        a('s_mul_i32 s%d, s%d, 43' % (sT0, sBP))
        a('s_lshr_b32 s%d, s%d, 8' % (sT0, sT0))
        a('s_mul_i32 s%d, s%d, 6' % (sT0, sT0))
        a('s_sub_u32 s%d, s%d, s%d' % (sROT, sBP, sT0))
    else:
        a('s_mov_b32 s%d, 0' % sROT)
    a('v_lshlrev_b32 v%d, 16, v%d' % (vWo_, vG))
    a('v_lshl_add_u32 v%d, v%d, 4, v%d' % (vWo_, vR, vWo_))
    a('s_lshl_b32 s%d, s%d, 9' % (sT2, sHKV))
    a('s_lshl_b32 s%d, s%d, 8' % (sT0, sH))
    a('s_add_u32 s%d, s%d, s%d' % (sT2, sT2, sT0))
    a('s_mul_i32 s%d, s%d, %d' % (sT0, sT1, 192 * 8192))
    a('s_add_u32 s%d, s%d, s%d' % (sT2, sT2, sT0))
    a('v_add_u32 v%d, s%d, v%d' % (vWo_, sT2, vWo_))
    a('s_lshl_b32 s%d, s%d, 7' % (sSIG, sT1))
    a('s_mov_b32 s%d, s%d' % (sKS, sROT))
    a('s_waitcnt lgkmcnt(0)')
    srd(sX, sX_, '%d' % (128 * 1152))
    stamp(2, True)
    for t in range(3):
        a('buffer_load_dwordx4 %s, v%d, %s, 0 offen offset:%d %s' % (vr(vXF + 4 * t, 4), vXo, sr(sX, 4), 128 * t, xflags))
    srd(sWQ, sWQ_, '%d' % (0 if noq else 576 * 8192))
    def nextks():
        a('s_add_u32 s%d, s%d, 1' % (sKS, sKS))
        a('s_cmp_eq_u32 s%d, 6' % sKS)
        a('s_cselect_b32 s%d, 0, s%d' % (sKS, sKS))
    def qissue(u):
        a('s_lshl_b32 s%d, s%d, 18' % (sT2, sKS))
        for i in range(8):
            a('buffer_load_dwordx4 %s, v%d, %s, s%d offen %s' % (vr(vRW + 32 * (u % nring) + 4 * i, 4), vWo_, sr(sWQ, 4), sT2, wqflags))
            if i < 7:
                a('s_add_u32 s%d, s%d, 8192' % (sT2, sT2))
        if u < 5:
            nextks()
    def xstage(nout):
        a('s_mul_i32 s%d, s%d, 3200' % (sT0, sNB))
        a('v_mul_u32_u24 v%d, 400, v3' % vXL)
        a('v_add3_u32 v%d, v%d, v4, s%d' % (vXL, vXL, sT0))
        a('v_bfe_u32 v3, v0, 3, 1')
        a('v_and_b32 v4, 3, v0')
        a('v_lshl_add_u32 v3, v3, 2, v4')
        a('v_mul_u32_u24 v3, 400, v3')
        a('v_lshl_add_u32 v3, v%d, 4, v3' % vG)
        a('v_add_u32 v3, s%d, v3' % sT0)
        a('s_mov_b32 s%d, s%d' % (sT1, sROT))
        for u in range(6):
            a('s_lshl_b32 s%d, s%d, 6' % (sT0, sT1))
            a('v_add_u32 v%d, s%d, v3' % (12 + u, sT0))
            if u < 5:
                a('s_add_u32 s%d, s%d, 1' % (sT1, sT1))
                a('s_cmp_eq_u32 s%d, 6' % sT1)
                a('s_cselect_b32 s%d, 0, s%d' % (sT1, sT1))
        a('s_waitcnt vmcnt(%d)' % nout)
        for t in range(3):
            a('ds_write_b128 v%d, %s offset:%d' % (vXL, vr(vXF + 4 * t, 4), XP + 128 * t))
        a('s_waitcnt lgkmcnt(0)')
        for u in range(6):
            a('ds_read_b128 %s, v%d offset:%d' % (vr(vXF + 4 * u, 4), 12 + u, XP))
    def qcomp(u, nout):
        rb = vRW + 32 * (u % nring)
        a('s_waitcnt vmcnt(%d)%s' % (nout, ' lgkmcnt(0)' if u == 0 else ''))
        if u in (0, 2, 5): stamp({0: 4, 2: 5, 5: 6}[u], True)
        def perms(j):
            tt = vHT + 4 * (j & 1)
            x = sPHI if (j & 1) else sPLO
            for pp in range(4):
                a('v_perm_b32 v%d, v%d, v%d, s%d' % (tt + pp, rb + (2 * pp + 1) * 4 + (j >> 1), rb + (2 * pp) * 4 + (j >> 1), x))
        def mm(j):
            a('v_mfma_f32_16x16x32_bf16 %s, %s, %s, %s' % (vr(vACC + 4 * j, 4), vr(vHT + 4 * (j & 1), 4), vr(vXF + 4 * u, 4), '0' if u == 0 else vr(vACC + 4 * j, 4)))
        perms(0)
        for j in range(7):
            perms(j + 1)
            mm(j)
        a('s_nop 0')
        mm(7)
    for u in range(6):
        qissue(u)
        if u == 5:
            stamp(3, True)
        if u == bar0u:
            if bar0:
                if bar0late:
                    a('s_cmp_lt_u32 s%d, 6' % sW)
                    a('s_cbranch_scc1 L1_nb0')
                a('s_barrier')
                if bar0late:
                    a.label('L1_nb0')
        if u == qpipe:
            xstage(8 * (qpipe + 1))
        if u >= qpipe:
            qcomp(u - qpipe, 8 * qpipe)
    for u in range(6 - qpipe, 6):
        qcomp(u, 40 - 8 * u)
    a('v_mbcnt_lo_u32_b32 v%d, -1, 0' % vRW)
    a('v_mbcnt_hi_u32_b32 v%d, -1, v%d' % (vRW, vRW))
    a('v_and_b32 v%d, 31, v%d' % (vRW + 1, vRW))
    a('v_mul_u32_u24 v%d, %d, v%d' % (vRW + 1, QS, vRW + 1))
    a('v_lshrrev_b32 v%d, 5, v%d' % (vRW + 2, vRW))
    a('v_mul_u32_u24 v%d, 384, v%d' % (vRW + 2, vRW + 2))
    a('v_add_u32 v%d, v%d, v%d' % (vRW + 1, vRW + 1, vRW + 2))
    a('v_add_u32 v%d, s%d, v%d' % (vRW + 1, sSIG, vRW + 1))
    a('s_mov_b32 s%d, 0x0f0f0f0f' % sEX)
    a('s_cmp_eq_u32 s%d, 0' % sH)
    a('s_cselect_b32 s%d, s%d, 0xf0f0f0f0' % (sEX, sEX))
    a('s_mov_b32 s%d, s%d' % (sEX + 1, sEX))
    a('s_mov_b64 exec, %s' % sr(sEX, 2))
    for j in range(8):
        a('ds_write_b128 v%d, %s offset:%d' % (vRW + 1, vr(vACC + 4 * j, 4), QP + j * 16))
    a('s_mov_b64 exec, -1')
    a('s_waitcnt lgkmcnt(0)')
    stamp(1)
    if bar0 and bar0late:
        a('s_cmp_ge_u32 s%d, 6' % sW)
        a('s_cbranch_scc1 L1_nb1')
        a('s_barrier')
        a.label('L1_nb1')
    a('s_barrier')

    vWOo = 3
    srd(sWO, sWO_, '%d' % (4096 * 1152))
    a('v_lshrrev_b32 v1, 4, v%d' % vRW)
    a('v_and_b32 v2, 15, v%d' % vRW)
    a('v_mul_u32_u24 v1, 2304, v1')
    a('v_mul_u32_u24 v2, 12, v2')
    a('s_mul_i32 s%d, s%d, 192' % (sT0, sNB))
    a('s_mul_i32 s%d, s%d, %d' % (sT1, sHKV, 256 * 1152))
    a('s_add_u32 s%d, s%d, s%d' % (sT0, sT0, sT1))
    a('v_add3_u32 v%d, v1, v2, s%d' % (vWOo, sT0))
    a('s_and_b32 s%d, s%d, %d' % (sROT, sBP, 7 if worot else 0))
    if woprio is not None:
        a('s_setprio %d' % woprio)
    a('s_barrier')
    stamp(2)
    def rawq(n, i): return 8 * (7 - n) + i
    def fragq(n, t): return 58 - 6 * n + t
    if not nowo:
        for n in range(8):
            a('s_add_u32 s%d, s%d, %d' % (sT0, sROT, n))
            a('s_and_b32 s%d, s%d, 7' % (sT0, sT0))
            a('s_mul_i32 s%d, s%d, %d' % (sT0, sT0, 32 * 1152))
            for i3 in range(4):
                for e in range(2):
                    i = i3 + 4 * e
                    if wowin is not None:
                        a('s_waitcnt vmcnt(%d)' % (wowin - 1))
                    elif n == 7 and i3 == 3 and e == 1:
                        a('s_waitcnt vmcnt(62)')
                    a('buffer_load_dwordx3 %s, v%d, %s, s%d offen offset:%d %s' % (vr(4 * rawq(n, i), 3), vWOo, sr(sWO, 4), sT0, 1152 * e, woflags))
                if i3 < 3:
                    a('s_add_u32 s%d, s%d, %d' % (sT0, sT0, 8 * 1152))
        stamp(3)
    if barB:
        a('s_barrier')
    if not nowo:
        for n in range(8):
            a('s_waitcnt vmcnt(%d)' % (56 - 8 * n))
            moves = []
            ntmp = 0
            for t in range(6):
                fq = fragq(n, t)
                direct = fq >= 8 * (8 - n)
                x = sPHI if (t & 1) else sPLO
                for pp in range(4):
                    if direct:
                        dst = 4 * fq + pp
                    else:
                        dst = 4 * ntmp + 3; ntmp += 1
                        moves.append((4 * fq + pp, dst))
                    a('v_perm_b32 v%d, v%d, v%d, s%d' % (dst, 4 * rawq(n, 2 * pp + 1) + (t >> 1), 4 * rawq(n, 2 * pp) + (t >> 1), x))
            for d, s_ in moves:
                a('v_mov_b32 v%d, v%d' % (d, s_))
    stamp(4)
    a('v_mbcnt_lo_u32_b32 v0, -1, 0')
    a('v_mbcnt_hi_u32_b32 v0, -1, v0')
    vDA, vOFR = 8, 32
    a('v_lshrrev_b32 v5, 4, v0')
    a('v_lshlrev_b32 v5, 7, v5')
    a('v_and_b32 v2, 7, v0')
    a('v_lshl_add_u32 v5, v2, 4, v5')
    for n in range(8):
        a('s_add_u32 s%d, s%d, %d' % (sT0, sROT, n))
        a('s_and_b32 s%d, s%d, 7' % (sT0, sT0))
        a('s_lshl_b32 s%d, s%d, 9' % (sT0, sT0))
        a('v_add_u32 v%d, s%d, v5' % (vOFR + 4 * n, sT0))
    a.label('L1_bar3')
    a('s_and_b32 s%d, s%d, 3' % (sT0, sW))
    a('s_lshl_b32 s%d, s%d, 10' % (sT0, sT0))
    a('s_lshr_b32 s%d, s%d, 2' % (sT1, sW))
    a('s_lshl_b32 s%d, s%d, 13' % (sT2, sT1))
    a('s_add_u32 s%d, s%d, s%d' % (sT0, sT0, sT2))
    a('v_lshlrev_b32 v1, 4, v0')
    a('v_add_u32 v1, s%d, v1' % sT0)
    a('v_and_b32 v2, 7, v0')
    a('v_lshlrev_b32 v3, 3, v2')
    a('s_lshl_b32 s%d, s%d, 7' % (sT2, sT1))
    a('v_add_u32 v3, s%d, v3' % sT2)
    a('v_lshrrev_b32 v4, 2, v2')
    a('v_bfe_u32 v6, v0, 3, 2')
    a('v_lshl_add_u32 v4, v4, 2, v6')
    a('v_lshlrev_b32 v4, 9, v4')
    a('v_and_b32 v6, 3, v0')
    a('v_lshl_add_u32 v4, v6, 4, v4')
    a('v_lshrrev_b32 v6, 5, v0')
    a('v_lshl_add_u32 v4, v6, 3, v4')
    a('s_and_b32 s%d, s%d, 3' % (sT0, sW))
    a('s_lshl_b32 s%d, s%d, 7' % (sT0, sT0))
    a('s_lshl_b32 s%d, s%d, 6' % (sT2, sT1))
    a('s_add_u32 s%d, s%d, s%d' % (sT0, sT0, sT2))
    a('v_add_u32 v4, s%d, v4' % sT0)
    a('s_lshl_b32 s%d, s%d, 4' % (sT0, sBP))
    a('s_add_u32 s%d, s%d, s%d' % (sT0, sT0, sHKV))
    a('s_mul_i32 s%d, s%d, %d' % (sT0, sT0, PSZ))
    a('s_add_u32 s%d, s%d, %d' % (sT0, sT0, POFF))
    srd(sP, sWS_, '%d' % PSZ, 's%d' % sT0)
    a('s_mul_i32 s%d, s%d, 3072' % (sT2, sNB))
    a('s_barrier')
    stamp(5)
    a('ds_read_b64 v[8:9], v3 offset:%d' % ML)
    a('ds_read_b64 v[10:11], v3 offset:%d' % (ML + 64))
    a('ds_read_b128 v[12:15], v1 offset:%d' % OP)
    a('ds_read_b128 v[16:19], v1 offset:%d' % (OP + 4096))
    a('s_waitcnt lgkmcnt(2)')
    a('v_max_f32 v20, v8, v10')
    a('v_sub_f32 v8, v8, v20')
    a('v_sub_f32 v10, v10, v20')
    a('v_exp_f32 v8, v8')
    a('v_exp_f32 v10, v10')
    a('s_nop 0')
    a('v_mul_f32 v9, v8, v9')
    a('v_fma_f32 v9, v10, v11, v9')
    a('v_rcp_f32 v9, v9')
    a('s_nop 0')
    a('v_mul_f32 v8, v8, v9')
    a('v_mul_f32 v10, v10, v9')
    a('s_waitcnt lgkmcnt(0)')
    for q in range(4):
        a('v_mul_f32 v%d, v8, v%d' % (12 + q, 12 + q))
    for q in range(4):
        a('v_fma_f32 v%d, v10, v%d, v%d' % (12 + q, 16 + q, 12 + q))
    a('v_cvt_pk_bf16_f32 v20, v12, v13')
    a('v_cvt_pk_bf16_f32 v21, v14, v15')
    a('ds_write_b64 v4, v[20:21] offset:%d' % OF)
    a('s_waitcnt lgkmcnt(0)')
    a('s_barrier')
    stamp(6)
    a('s_cmp_ge_u32 s%d, 2' % sW)
    a('s_cbranch_scc1 L1_op')
    a('s_waitcnt vmcnt(0)')
    a('s_branch L1_fin')
    a.label('L1_op')
    for n in range(8):
        a('ds_read_b128 %s, v%d offset:%d' % (vr(vOFR + 4 * n, 4), vOFR + 4 * n, OF))
    for n in range(8):
        a('s_waitcnt lgkmcnt(%d)' % (7 - n))
        for t in range(6):
            a('v_mfma_f32_16x16x32_bf16 %s, %s, %s, %s' % (vr(vDA + 4 * t, 4), vr(4 * fragq(n, t), 4), vr(vOFR + 4 * n, 4), '0' if n == 0 else vr(vDA + 4 * t, 4)))
    a('s_mov_b32 s%d, 0x00ff00ff' % sEX)
    a('s_mov_b32 s%d, 0x00ff00ff' % (sEX + 1))
    a('s_mov_b64 exec, %s' % sr(sEX, 2))
    a('s_nop 0')
    for j in range(6):
        a('buffer_store_dwordx4 %s, v5, %s, s%d offen offset:%d %s' % (vr(vDA + 4 * j, 4), sr(sP, 4), sT2, j * 512, pflags))
        if j < 5: a('s_nop 0')
    a('s_mov_b64 exec, -1')
    a.label('L1_fin')
    if dbg:
        a('s_getreg_b32 s%d, hwreg(HW_REG_XCC_ID, 0, 4)' % (sST + 8))
    if stamps:
        a('s_waitcnt vmcnt(0)')
        stamp(7)
        a('s_waitcnt lgkmcnt(0)')
        a('s_lshl_b32 s%d, s2, 3' % sT0)
        a('s_add_u32 s%d, s%d, s%d' % (sT0, sT0, sW))
        a('s_lshl_b32 s%d, s%d, 6' % (sT0, sT0))
        a('v_mov_b32 v1, s%d' % sT0)
        for k in range(16):
            a('v_mov_b32 v%d, s%d' % (8 + k, sST + k))
        a('s_mov_b64 exec, 1')
        for k in range(4):
            a('global_store_dwordx4 v1, %s, %s offset:%d' % (vr(8 + 4 * k, 4), sr(sWS_, 2), 16 * k))
    a.label('L1_end')
    a('s_endpgm')
    k1 = a.text()

    a = Asm()
    a('s_cmp_ge_u32 s2, 18')
    a('s_cbranch_scc1 L2_end')
    a('s_load_dwordx2 s[4:5], s[0:1], 40')
    a('s_load_dwordx2 s[6:7], s[0:1], 56')
    if dbg:
        a('s_load_dwordx2 s[22:23], s[0:1], 48')
        a('s_memrealtime s[24:25]')
    a('v_lshlrev_b32 v1, 4, v0')
    a('s_mul_i32 s16, s3, %d' % (16 * PSZ))
    a('s_lshl_b32 s17, s2, 10')
    a('s_add_u32 s16, s16, s17')
    a('s_add_u32 s16, s16, %d' % POFF)
    a('s_mul_i32 s18, s2, 21846')
    a('s_lshr_b32 s18, s18, 16')
    a('s_mul_i32 s19, s18, 3')
    a('s_sub_u32 s19, s2, s19')
    a('s_mul_i32 s18, s18, 192')
    a('s_lshl_b32 s19, s19, 2')
    a('s_add_u32 s18, s18, s19')
    a('s_mul_i32 s19, s3, %d' % (8 * 1152))
    a('s_add_u32 s18, s18, s19')
    a('v_and_b32 v2, 7, v0')
    a('v_mul_u32_u24 v2, 1152, v2')
    a('v_bfe_u32 v3, v0, 3, 2')
    a('v_mul_u32_u24 v3, 48, v3')
    a('v_add_u32 v2, v2, v3')
    a('v_lshrrev_b32 v3, 5, v0')
    a('v_lshl_add_u32 v2, v3, 1, v2')
    a('v_add_u32 v2, s18, v2')
    a('s_waitcnt lgkmcnt(0)')
    a('s_add_u32 s8, s6, s16'); a('s_addc_u32 s9, s7, 0'); a('s_mov_b32 s10, %d' % (16 * PSZ)); a('s_mov_b32 s11, 0x20000')
    a('s_mov_b32 s12, s4'); a('s_mov_b32 s13, s5'); a('s_mov_b32 s14, %d' % (128 * 1152)); a('s_mov_b32 s15, 0x20000')
    for h in range(16):
        if h:
            a('s_mov_b32 s20, %d' % (h * PSZ))
        a('buffer_load_dwordx4 %s, v1, s[8:11], %s offen' % (vr(4 + 4 * h, 4), 's20' if h else '0'))
    for h in range(1, 16):
        a('s_waitcnt vmcnt(%d)' % (15 - h))
        a('v_pk_add_f32 v[4:5], v[4:5], %s' % vr(4 + 4 * h, 2))
        a('v_pk_add_f32 v[6:7], v[6:7], %s' % vr(6 + 4 * h, 2))
    a('v_cvt_pk_bf16_f32 v8, v4, v5')
    a('v_cvt_pk_bf16_f32 v9, v6, v7')
    a('buffer_store_short v8, v2, s[12:15], 0 offen')
    a('buffer_store_short_d16_hi v8, v2, s[12:15], 0 offen offset:12')
    a('buffer_store_short v9, v2, s[12:15], 0 offen offset:24')
    a('buffer_store_short_d16_hi v9, v2, s[12:15], 0 offen offset:36')
    if dbg:
        a('s_waitcnt vmcnt(0)')
        a('s_memrealtime s[26:27]')
        a('s_or_b32 s28, s2, s3')
        a('s_cmp_lg_u32 s28, 0')
        a('s_cbranch_scc1 L2_end')
        a('v_lshlrev_b32 v1, 11, v0')
        for i in range(4):
            for k, o in enumerate((0, 8, 24, 7 * 64 + 56, 32)):
                a('global_load_dword v%d, v1, s[6:7] offset:%d' % (10 + 5 * i + k, 512 * i + o))
        a('s_waitcnt vmcnt(0) lgkmcnt(0)')
        a('v_mov_b32 v1, 0')
        w = 0
        for k in range(4):
            a('v_max_u32 v2, v%d, v%d' % (10 + k, 15 + k)); a('v_max3_u32 v2, v2, v%d, v%d' % (20 + k, 25 + k))
            a('v_min_u32 v3, v%d, v%d' % (10 + k, 15 + k)); a('v_min3_u32 v3, v3, v%d, v%d' % (20 + k, 25 + k))
            a('v_not_b32 v3, v3')
            if k in (1, 3):
                a('global_atomic_umax v1, v2, s[22:23] offset:%d' % (4 * w)); w += 1
            a('global_atomic_umax v1, v3, s[22:23] offset:%d' % (4 * w)); w += 1
            a('s_waitcnt vmcnt(0)')
        for i in range(4):
            a('v_lshlrev_b32 v2, v%d, 1' % (14 + 5 * i))
            a('v_lshlrev_b32 v3, 2, v0'); a('v_add_u32 v3, %d, v3' % i); a('v_and_b32 v3, 7, v3'); a('v_lshlrev_b32 v3, 2, v3')
            a('global_atomic_or v3, v2, s[22:23] offset:32')
            a('s_waitcnt vmcnt(0)')
        a('s_mov_b64 exec, 1')
        a('v_mov_b32 v2, s24')
        a('v_mov_b32 v3, s26')
        a('global_store_dword v1, v2, s[22:23] offset:24')
        a('global_store_dword v1, v3, s[22:23] offset:28')
    a.label('L2_end')
    a('s_endpgm')
    k2 = a.text()

    txt = HEADER
    txt += '; @launch kernel=%s grid=(256,1,1) block=(512,1,1) lds=%d\n' % (K1, LDS_BYTES)
    txt += '; @launch kernel=%s grid=(18,16,1) block=(64,1,1) lds=0\n' % K2
    txt += '.amdgcn_target "amdgcn-amd-amdhsa--gfx950"\n.text\n'
    txt += kernel_begin(K1) + k1 + kernel_begin(K2) + k2
    txt += '.section .rodata,"a"\n' + kernel_desc(K1, 256, 96) + kernel_desc(K2, 72, 32, wgy=True)
    return txt

if __name__ == '__main__':
    open('g3.s', 'w').write(gen())
    open('g3_st.s', 'w').write(gen(stamps=True))
```
